```python
import torch

def _softmax(x, axis=-1):
    return torch.softmax(x, dim=axis)

def _gelu(x):
    return torch.nn.functional.gelu(x, approximate='tanh')

def _silu(x):
    return torch.nn.functional.silu(x)

def _sigmoid(x):
    return torch.sigmoid(x)

def _layernorm(x, axis=-1, eps=1e-05):
    m = x.mean(dim=axis, keepdim=True)
    v = x.var(dim=axis, keepdim=True, unbiased=False)
    return (x - m) / torch.sqrt(v + eps)

def _scatter_add(tgt, idx, src, axis=0):
    return tgt.clone().index_add_(axis, idx, src)

def _segment_sum(src, seg, n):
    out = torch.zeros((n,) + src.shape[1:], dtype=src.dtype)
    return out.index_add_(0, seg, src)

def _pad(x, pw):
    flat = tuple((v for pair in reversed(pw) for v in pair))
    return torch.nn.functional.pad(x, flat)
kernel_name = 'sequential_preLN__sliding_block__mixer_gmlp__prompt'

def setup_inputs():

    _w = lambda a: (lambda t: t.to(torch.bfloat16) if t.is_floating_point() else t)(torch.as_tensor(a))

    def _A_setup():
        B, S, D = (1, 2048, 1024)
        return {'x': _w((lambda *s: torch.randn(*s, dtype=torch.bfloat16) * 0.05)(B, S, D)), 'wqkv': _w((lambda *s: torch.randn(*s, dtype=torch.bfloat16) * 0.05)(D, 3 * D)), 'wo': _w((lambda *s: torch.randn(*s, dtype=torch.bfloat16) * 0.05)(D, D))}
    _A_in = _A_setup()

    def _B_setup():
        B, S, D, F = (1, 2048, 1024, 3584)
        Fh = F // 2
        return {'x': _w((lambda *s: torch.randn(*s, dtype=torch.bfloat16) * 0.05)(B, S, D)), 'w_in': _w((lambda *s: torch.randn(*s, dtype=torch.bfloat16) * 0.8)(D, 2 * Fh)), 'w_sp': _w(0.01 * (lambda *s: torch.randn(*s, dtype=torch.bfloat16) * 0.8)(S, S)), 'b_sp': _w(1.0 + 0.01 * (lambda *s: torch.randn(*s, dtype=torch.bfloat16) * 0.05)(S)), 'w_out': _w((lambda *s: torch.randn(*s, dtype=torch.bfloat16) * 0.05)(Fh, D))}
    _B_in = _B_setup()
    return {'A_x': _A_in['x'], 'A_wqkv': _A_in['wqkv'], 'A_wo': _A_in['wo'], 'B_x': _B_in['x'], 'B_w_in': _B_in['w_in'], 'B_w_sp': _B_in['w_sp'], 'B_b_sp': _B_in['b_sp'], 'B_w_out': _B_in['w_out']}

def reference(A_x, A_wqkv, A_wo, B_x, B_w_in, B_w_sp, B_b_sp, B_w_out):

    def _A_ref(x, wqkv, wo):
        B, S, D = x.shape
        H = 32
        Dh = D // H
        W = 256
        qkv = (lambda x, *d: x.permute(*d))((x @ wqkv).reshape(B, S, 3, H, Dh), 2, 0, 3, 1, 4)
        q, k, v = (qkv[0], qkv[1], qkv[2])
        scores = torch.einsum('bhqd,bhkd->bhqk', q, k) * Dh ** (-0.5)
        idx = torch.arange(S)
        mask = (idx[:, None] - idx[None, :] >= 0) & (idx[:, None] - idx[None, :] < W)
        scores = torch.where(mask[None, None], scores, -1000000000.0)
        p = _softmax(scores, axis=-1)
        o = torch.einsum('bhqk,bhkd->bhqd', p, v)
        return (lambda x, *d: x.permute(*d))(o, 0, 2, 1, 3).reshape(B, S, D) @ wo

    def _B_ref(x, w_in, w_sp, b_sp, w_out):
        B, S, D = x.shape
        F = w_in.shape[-1]
        Fh = F // 2
        z = _gelu(torch.einsum('bsd,df->bsf', x, w_in))
        z1 = z[..., :Fh].clone()
        z2 = _layernorm(z[..., Fh:], axis=-1)
        g = torch.einsum('ts,bsf->btf', w_sp, z2) + b_sp[None, :, None]
        return torch.einsum('bsf,fd->bsd', z1 * g, w_out)
    x = A_x
    h = x + _A_ref(_layernorm(x, axis=-1), A_wqkv, A_wo)
    h2 = h + _B_ref(_layernorm(h, axis=-1), B_w_in, B_w_sp, B_b_sp, B_w_out)
    return h2
```

```python
MB = 1 << 20
XN, QKV, O_, H_, Z1, Z2, U_, CS, ST = 0, 4*MB, 16*MB, 20*MB, 24*MB, 32*MB, 40*MB, 56*MB, 57*MB
P_X, P_WQKV, P_WO, P_WIN, P_WSP, P_BSP, P_WOUT, P_OUT, P_DBG, P_WS = 0, 8, 16, 32, 40, 48, 56, 64, 72, 80

class K:
    def __init__(s, name, grid, block, lds, vgpr):
        s.name, s.grid, s.block, s.lds, s.vgpr = name, grid, block, lds, vgpr
        s.L = []
    def __call__(s, txt):
        for l in txt.strip('\n').split('\n'):
            l = l.strip()
            if l: s.L.append(l if l.endswith(':') else '    ' + l)
    def lab(s, x): return f'L_{s.name}_{x}'
    def ptr(s, sreg, slot): s(f's_load_dwordx2 s[{sreg}:{sreg+1}], s[0:1], {slot}')
    def srd(s, d, p, off, size, soff=None):
        s(f's_add_u32 s{d}, s{p}, {off}\ns_addc_u32 s{d+1}, s{p+1}, 0')
        if soff is not None: s(f's_add_u32 s{d}, s{d}, s{soff}\ns_addc_u32 s{d+1}, s{d+1}, 0')
        s(f's_mov_b32 s{d+2}, {size}\ns_mov_b32 s{d+3}, 0x20000')
    def text(s):
        n = s.name + '_kernel'
        return f'.globl {n}\n.p2align 8\n.type {n},@function\n{n}:\n' + '\n'.join(s.L) + '\n'
    def desc(s):
        return f'''.p2align 6
.amdhsa_kernel {s.name}_kernel
  .amdhsa_next_free_vgpr {s.vgpr}
  .amdhsa_next_free_sgpr 96
  .amdhsa_accum_offset {(s.vgpr+3)//4*4}
  .amdhsa_group_segment_fixed_size 0
  .amdhsa_kernarg_size 88
  .amdhsa_user_sgpr_count 2
  .amdhsa_user_sgpr_kernarg_segment_ptr 1
  .amdhsa_system_sgpr_workgroup_id_x 1
.end_amdhsa_kernel
'''
    def launch(s): return f'; @launch kernel={s.name}_kernel grid=({s.grid},1,1) block=({s.block},1,1) lds={s.lds}\n'

def vr(a, n=1): return f'v{a}' if n == 1 else f'v[{a}:{a+n-1}]'

class Gemm:
    def __init__(g, name, BN, Kd, lda, ldw, WR, WC, NS, wmode, xr, extra_lds=0, vgpr=256):
        g.BN, g.Kd, g.lda, g.ldw, g.WR, g.WC, g.NS, g.wmode, g.xr = BN, Kd, lda, ldw, WR, WC, NS, wmode, xr
        g.CW = WR*WC; g.MT = 8//WR; g.NT = BN//16//WC; g.nk = Kd//64
        g.STG = 16384 + BN*128; g.XL = g.STG*NS
        g.k = K(name, 256, (g.CW+4)*64, g.XL + extra_lds, vgpr)
        g.ACC = 16; g.FX = g.ACC + g.MT*g.NT*4; g.FS = (g.MT+g.NT)*4; g.FY = g.FX + g.FS; g.FREE = g.FY + g.FS
    def acc(g, mt, nt): return g.ACC + (mt*g.NT + nt)*4
    def head(g):
        k = g.k; xr = g.xr; lx = xr.bit_length()-1; nxc = 16//(32//xr); lc = nxc.bit_length()-1
        k(f'''s_cmp_ge_u32 s2, 256
        s_cbranch_scc1 {k.lab('end')}
        v_lshrrev_b32 v1, 6, v0
        v_and_b32 v0, 63, v0
        v_readfirstlane_b32 s3, v1
        s_and_b32 s6, s2, 7
        s_lshr_b32 s7, s2, 3
        s_lshr_b32 s4, s6, {lc}
        s_lshl_b32 s4, s4, {lx}
        s_and_b32 s28, s7, {xr-1}
        s_add_u32 s4, s4, s28
        s_and_b32 s5, s6, {nxc-1}
        s_mul_i32 s5, s5, {32//xr}
        s_lshr_b32 s28, s7, {lx}
        s_add_u32 s5, s5, s28
        v_and_b32 v1, 15, v0
        v_lshrrev_b32 v2, 4, v0''')
    def srds(g, pa, offa, sza, pw, offw, szw):
        k = g.k
        k(f's_mul_i32 s6, s4, {128*g.lda}')
        k.srd(8, pa, offa, 128*g.lda, 6)
        if g.wmode == 'tr':
            k(f's_mul_i32 s6, s5, {g.BN*2}'); k.srd(12, pw, offw, szw, 6); k(f's_sub_u32 s14, s14, s6')
        else:
            k(f's_mul_i32 s6, s5, {g.nk*g.BN*128}'); k.srd(12, pw, offw, g.nk*g.BN*128, 6)
        k(f's_cmp_ge_u32 s3, {g.CW}\ns_cbranch_scc1 {k.lab("loader")}')
    def loader(g, pre=None):
        k = g.k; NS = g.NS; BN = g.BN
        k(f'{k.lab("loader")}:\ns_sub_u32 s3, s3, {g.CW}')
        k(f'''v_lshrrev_b32 v3, 3, v0
        s_lshl_b32 s6, s3, 3
        v_add_u32 v3, s6, v3
        v_lshrrev_b32 v4, 1, v3
        v_xor_b32 v4, v4, v0
        v_and_b32 v4, 7, v4
        v_lshlrev_b32 v4, 4, v4
        s_mov_b32 s6, {g.lda}
        v_mad_u32_u24 v4, v3, s6, v4''')
        for i in range(1, 4): k(f'v_add_u32 v{4+i}, {32*g.lda*i}, v4')
        npw = BN//8; nw = (npw+3)//4
        for i in range(nw):
            d = 8+i
            k(f's_lshl_b32 s6, s3, 6\ns_add_u32 s6, s6, {256*i}\nv_add_u32 v3, s6, v0')
            if g.wmode == 'frag': k(f'v_lshlrev_b32 v{d}, 4, v3'); continue
            c = BN//8; M = (65536+c-1)//c
            assert all((q*M) >> 16 == q//c for q in range(64*c))
            k(f'''s_mov_b32 s6, {M}
            v_mul_u32_u24 v20, s6, v3
            v_lshrrev_b32 v20, 16, v20
            v_mul_u32_u24 v21, {c}, v20
            v_sub_u32 v21, v3, v21
            v_bfe_u32 v22, v20, 3, 1''')
            if BN != 224: k('v_bfe_u32 v23, v20, 1, 1\nv_lshl_add_u32 v22, v22, 1, v23')
            k(f'''v_lshlrev_b32 v22, 1, v22
            v_xor_b32 v21, v21, v22
            v_lshlrev_b32 v21, 4, v21
            s_mov_b32 s6, {g.ldw}
            v_mad_u32_u24 v{d}, v20, s6, v21''')
        wstep = 64*g.ldw if g.wmode == 'tr' else BN*128
        k(f's_lshl_b32 s32, s3, 10\ns_mov_b32 s33, 0\ns_mov_b32 s34, 0\ns_add_u32 s35, s32, {g.XL}')
        def issue(n):
            for i in range(4):
                k(f's_add_u32 m0, s32, {4096*i}\ns_nop 0\nbuffer_load_dwordx4 v{4+i}, s[8:11], s33 offen lds')
            for i in range(n):
                k(f's_add_u32 m0, s32, {16384+4096*i}\ns_nop 0\nbuffer_load_dwordx4 v{8+i}, s[12:15], s34 offen lds')
            k(f'''s_add_u32 s33, s33, 128
            s_add_u32 s34, s34, {wstep}
            s_add_u32 s32, s32, {g.STG}
            s_cmp_ge_u32 s32, s35
            s_cselect_b32 s6, {g.XL}, 0
            s_sub_u32 s32, s32, s6''')
        variants = [(nw, 'a')]
        if npw % 4:
            k(f's_cmp_ge_u32 s3, {npw % 4}\ns_cbranch_scc1 {k.lab("ldb")}')
            variants.append((nw-1, 'b'))
        for n, t in variants:
            P = 4+n
            k(f'{k.lab("ld"+t)}:')
            if pre: pre(0)
            for s in range(NS-1): issue(n)
            if pre: k(f's_waitcnt vmcnt({P*(NS-1)})'); pre(1)
            k(f's_mov_b32 s36, {g.nk-NS+1}\n{k.lab("lp"+t)}:')
            k(f's_waitcnt vmcnt({P*(NS-2)})\ns_barrier'); issue(n)
            k(f's_sub_u32 s36, s36, 1\ns_cmp_lg_u32 s36, 0\ns_cbranch_scc1 {k.lab("lp"+t)}')
            for s in range(NS-2, -1, -1): k(f's_waitcnt vmcnt({P*s})\ns_barrier')
            k('s_endpgm')
    def csetup(g):
        k = g.k; S = g.BN*2
        k(f's_and_b32 s31, s3, {g.WC-1}\ns_lshr_b32 s30, s3, {g.WC.bit_length()-1}')
        k(f'''v_lshrrev_b32 v3, 1, v1
        v_xor_b32 v3, v3, v2
        v_lshlrev_b32 v3, 4, v3
        v_lshl_add_u32 v3, v1, 7, v3
        s_mul_i32 s6, s30, {g.MT*2048}
        v_add_u32 v4, s6, v3
        v_xor_b32 v5, 64, v4''')
        if g.wmode == 'frag':
            g.NB = 1
            k(f'v_lshlrev_b32 v6, 4, v0\ns_mul_i32 s6, s31, {g.NT*1024}\ns_add_u32 s6, s6, 16384\nv_add_u32 v6, s6, v6')
        else:
            g.NB = min(g.NT, 2 if g.BN == 224 else 4)
            k(f'''v_lshrrev_b32 v10, 2, v1
            v_lshl_add_u32 v11, v2, 3, v10
            v_mul_u32_u24 v11, {S}, v11
            v_and_b32 v12, 3, v0
            v_lshl_add_u32 v11, v12, 3, v11
            v_add_u32 v11, 16384, v11
            v_and_b32 v12, 1, v2''')
            if g.BN != 224: k('v_lshrrev_b32 v10, 1, v10\nv_lshl_add_u32 v12, v12, 1, v10')
            for j in range(g.NB):
                k(f's_mul_i32 s6, s31, {g.NT}\ns_add_u32 s6, s6, {j}\nv_xor_b32 v10, s6, v12\nv_lshl_add_u32 v{6+j}, v10, 5, v11')
        for i in range(g.MT*g.NT*4): k(f'v_mov_b32 v{g.ACC+i}, 0')
        k('s_mov_b32 s32, 0')
    def reads(g, kk, F):
        r = []; S = g.BN*2
        ra = [f'ds_read_b128 {vr(F+4*mt,4)}, v{4+kk} offset:{mt*2048}' for mt in range(g.MT)]
        for nt in range(g.NT):
            d = F + 4*(g.MT+nt)
            if g.wmode == 'frag': r.append(f'ds_read_b128 {vr(d,4)}, v6 offset:{(kk*(g.BN//16)+nt)*1024}')
            else:
                for h in range(2):
                    r.append(f'ds_read_b64_tr_b16 {vr(d+2*h,2)}, v{6+nt % g.NB} offset:{(32*kk+4*h)*S + (nt//g.NB)*g.NB*32}')
        return ra + r
    def mfmas(g, F, T):
        r = []
        for nt in range(g.NT):
            for mt in range(g.MT):
                a, w, c = vr(F+4*mt, 4), vr(F+4*(g.MT+nt), 4), vr(g.acc(mt, nt), 4)
                r.append(f'v_mfma_f32_16x16x32_bf16 {c}, {a}, {w}, {c}' if T else f'v_mfma_f32_16x16x32_bf16 {c}, {w}, {a}, {c}')
        return r
    def mix(g, ms, rs, extra=()):
        k = g.k; rs = list(rs); extra = list(extra)
        per = -(-len(rs) // max(1, len(ms)-min(6, len(ms)//2)))
        for m in ms:
            k(m)
            if rs:
                for _ in range(per):
                    if rs: k(rs.pop(0))
            else:
                for _ in range(2):
                    if extra: k(extra.pop(0))
        for x in rs + extra: k(x)
    def mainloop(g, T=False, tag=''):
        k = g.k
        adv = [f's_add_u32 s32, s32, 1', f's_cmp_eq_u32 s32, {g.NS}', f's_mov_b32 s6, {g.STG}', f's_cselect_b32 s6, {-(g.NS-1)*g.STG}, s6',
               f's_cselect_b32 s32, 0, s32'] + [f'v_add_u32 v{i}, s6, v{i}' for i in range(4, 6+g.NB)]
        k('s_barrier')
        for r in g.reads(0, g.FX): k(r)
        k(f's_mov_b32 s36, {g.nk}\ns_branch {k.lab("mid"+tag)}\n.p2align 4\n{k.lab("loop"+tag)}:\ns_barrier')
        g.mix(g.mfmas(g.FY, T), g.reads(0, g.FX))
        k(f'{k.lab("mid"+tag)}:\ns_waitcnt lgkmcnt(0)')
        g.mix(g.mfmas(g.FX, T), g.reads(1, g.FY), adv + ['s_sub_u32 s36, s36, 1', 's_cmp_lg_u32 s36, 0'])
        k(f's_waitcnt lgkmcnt(0)\ns_cbranch_scc1 {k.lab("loop"+tag)}')
        for m in g.mfmas(g.FY, T): k(m)
        k('s_nop 7')
    def finish(g, pre=None):
        g.k('s_endpgm'); g.loader(pre); g.k(f'{g.k.lab("end")}:\ns_endpgm'); return g.k
    def pack_pair(g, c0, c1, d):
        g.k(f'''v_cvt_pk_bf16_f32 v{d}, v{c0}, v{c0+1}
        v_cvt_pk_bf16_f32 v{d+1}, v{c0+2}, v{c0+3}
        v_cvt_pk_bf16_f32 v{d+2}, v{c1}, v{c1+1}
        v_cvt_pk_bf16_f32 v{d+3}, v{c1+2}, v{c1+3}
        s_nop 1
        v_permlane16_swap_b32 v{d}, v{d+2}
        v_permlane16_swap_b32 v{d+1}, v{d+3}''')
    def pg16(g, d):
        g.k(f'v_and_b32 v{d}, 1, v2\nv_lshlrev_b32 v{d}, 5, v{d}\nv_lshrrev_b32 v3, 1, v2\nv_lshl_add_u32 v{d}, v3, 4, v{d}')
```

```python
from core import *
def wave_sum(k, v, t):
    for r in (8, 4, 2, 1): k(f's_nop 1\nv_add_f32_dpp v{v}, v{v}, v{v} row_ror:{r} row_mask:0xf bank_mask:0xf')
    for p in (16, 32): k(f'v_mov_b32 v{t}, v{v}\ns_nop 1\nv_permlane{p}_swap_b32 v{t}, v{v}\nv_add_f32 v{v}, v{v}, v{t}')
def unpack(k, src, n, dst):
    for i in range(n): k(f'v_lshlrev_b32 v{dst+2*i}, 16, v{src+i}\nv_and_b32 v{dst+2*i+1}, 0xffff0000, v{src+i}')

def k_pre():
    k = K('pre', 112+512+1, 256, 8192, 96)
    k.ptr(4, P_X); k.ptr(6, P_WS); k.ptr(20, P_WIN)
    k(f'''v_lshrrev_b32 v1, 6, v0
    v_and_b32 v2, 63, v0
    v_readfirstlane_b32 s3, v1
    s_waitcnt lgkmcnt(0)
    s_cmp_lt_u32 s2, 112
    s_cbranch_scc1 {k.lab('cs')}
    s_cmp_ge_u32 s2, 624
    s_cbranch_scc1 {k.lab('zero')}''')
    k.srd(8, 4, 0, 4*MB); k.srd(12, 6, XN, 4*MB)
    k(f'''s_sub_u32 s16, s2, 112
    s_lshl_b32 s16, s16, 2
    s_add_u32 s16, s16, s3
    s_lshl_b32 s16, s16, 11
    v_lshlrev_b32 v3, 4, v2
    buffer_load_dwordx4 v[4:7], v3, s[8:11], s16 offen
    buffer_load_dwordx4 v[8:11], v3, s[8:11], s16 offen offset:1024
    s_waitcnt vmcnt(0)''')
    unpack(k, 4, 8, 16)
    k('v_add_f32 v32, v16, v17')
    for i in range(18, 32): k(f'v_add_f32 v32, v32, v{i}')
    wave_sum(k, 32, 33)
    k('v_mul_f32 v32, 0x3a800000, v32')
    for i in range(16, 32): k(f'v_sub_f32 v{i}, v{i}, v32')
    k('v_mul_f32 v34, v16, v16')
    for i in range(17, 32): k(f'v_fmac_f32 v34, v{i}, v{i}')
    wave_sum(k, 34, 33)
    k('v_mov_b32 v35, 0x3727c5ac\nv_fmac_f32 v35, 0x3a800000, v34\nv_rsq_f32 v35, v35\ns_nop 0')
    for i in range(16, 32): k(f'v_mul_f32 v{i}, v{i}, v35')
    for i in range(8): k(f'v_cvt_pk_bf16_f32 v{4+i}, v{16+2*i}, v{17+2*i}')
    k('''buffer_store_dwordx4 v[4:7], v3, s[12:15], s16 offen
    buffer_store_dwordx4 v[8:11], v3, s[12:15], s16 offen offset:1024
    s_endpgm''')
    k(f'{k.lab("cs")}:')
    k.srd(8, 20, 0, 1024*7168); k.srd(12, 6, CS, 16*3584*4)
    k(f'''s_and_b32 s16, s2, 15
    s_lshr_b32 s17, s2, 4
    s_lshl_b32 s18, s16, 2
    s_add_u32 s18, s18, s3
    s_mul_i32 s18, s18, {16*7168}
    s_lshl_b32 s19, s17, 10
    s_add_u32 s18, s18, s19
    v_lshlrev_b32 v3, 4, v2''')
    for i in range(16): k(f'buffer_load_dwordx4 {vr(16+4*i,4)}, v3, s[8:11], s18 offen\ns_add_u32 s18, s18, 7168')
    for i in range(8): k(f'v_mov_b32 v{4+i}, 0')
    for i in range(16):
        k(f's_waitcnt vmcnt({15-i})')
        unpack(k, 16+4*i, 4, 80)
        for j in range(8): k(f'v_add_f32 v{4+j}, v{4+j}, v{80+j}')
    k(f'''v_lshlrev_b32 v3, 5, v0
    ds_write_b128 v3, v[4:7]
    ds_write_b128 v3, v[8:11] offset:16
    s_waitcnt lgkmcnt(0)
    s_barrier
    v_lshlrev_b32 v3, 3, v0
    ds_read_b64 v[4:5], v3
    ds_read_b64 v[6:7], v3 offset:2048
    ds_read_b64 v[8:9], v3 offset:4096
    ds_read_b64 v[10:11], v3 offset:6144
    s_mul_i32 s18, s16, {3584*4}
    s_lshl_b32 s19, s17, 11
    s_add_u32 s18, s18, s19
    s_waitcnt lgkmcnt(0)
    v_pk_add_f32 v[4:5], v[4:5], v[6:7]
    v_pk_add_f32 v[8:9], v[8:9], v[10:11]
    v_pk_add_f32 v[4:5], v[4:5], v[8:9]
    buffer_store_dwordx2 v[4:5], v3, s[12:15], s18 offen
    s_endpgm
    {k.lab('zero')}:
    s_cmp_gt_u32 s2, 624
    s_cbranch_scc1 {k.lab('end')}''')
    k.srd(12, 6, ST, 32768)
    k('v_lshlrev_b32 v3, 4, v0\ns_mov_b32 s16, 0')
    for i in range(4): k(f'v_mov_b32 v{4+i}, 0')
    for i in range(8): k(f'buffer_store_dwordx4 v[4:7], v3, s[12:15], s16 offen\ns_add_u32 s16, s16, 4096')
    k(f'{k.lab("end")}:\ns_endpgm')
    return k

def k_qkv(WR=2, NS=3):
    g = Gemm('qkv', 192, 1024, 2048, 6144, WR, 2, NS, 'tr', 8, vgpr=256 if WR == 2 else 168); k = g.k
    k.ptr(20, P_WS); k.ptr(22, P_WQKV); g.head(); k('s_waitcnt lgkmcnt(0)')
    k.srd(16, 20, QKV, 12*MB)
    g.srds(20, XN, 0, 22, 0, 1024*6144)
    g.csetup(); g.mainloop()
    g.pg16(4)
    k(f'''v_lshl_add_u32 v4, v1, 6, v4
    s_mul_i32 s6, s5, 6
    s_mul_i32 s7, s31, 3
    s_add_u32 s6, s6, s7
    s_lshl_b32 s6, s6, 17
    s_lshl_b32 s7, s4, 13
    s_add_u32 s6, s6, s7
    s_mul_i32 s7, s30, {g.MT*1024}
    s_add_u32 s6, s6, s7''')
    n = 0
    for p in range(3):
        for mt in range(g.MT):
            d = g.FX + 4*(n % 8); n += 1
            g.pack_pair(g.acc(mt, 2*p), g.acc(mt, 2*p+1), d)
            k(f'buffer_store_dwordx4 {vr(d,4)}, v4, s[16:19], s6 offen offset:{mt*1024}')
        k('s_add_u32 s6, s6, 0x20000')
    return g.finish()

def k_attn():
    k = K('attn', 256, 512, 65536, 256)
    S0, OA, LA, QF, KF, ON = 32, 176, 192, 208, 216, 248
    k.ptr(4, P_WS)
    k(f'''s_cmp_ge_u32 s2, 256
    s_cbranch_scc1 {k.lab('end')}
    v_lshrrev_b32 v1, 6, v0
    v_and_b32 v0, 63, v0
    v_readfirstlane_b32 s3, v1
    s_and_b32 s16, s2, 31
    s_lshr_b32 s17, s2, 5
    s_waitcnt lgkmcnt(0)''')
    k.srd(8, 4, QKV, 12*MB); k.srd(12, 4, O_, 4*MB)
    k(f'''s_lshl_b32 s18, s16, 17
    s_lshl_b32 s19, s17, 14
    s_add_u32 s18, s18, s19
    s_lshl_b32 s19, s3, 11
    s_add_u32 s20, s18, s19
    v_and_b32 v1, 31, v0
    v_lshrrev_b32 v2, 5, v0
    v_lshlrev_b32 v3, 6, v1
    v_lshl_add_u32 v3, v2, 4, v3
    buffer_load_dwordx4 {vr(QF,4)}, v3, s[8:11], s20 offen
    buffer_load_dwordx4 {vr(QF+4,4)}, v3, s[8:11], s20 offen offset:32
    v_lshlrev_b32 v4, 4, v0
    v_lshrrev_b32 v5, 4, v0
    v_lshlrev_b32 v5, 4, v5
    v_xor_b32 v5, v4, v5
    s_lshl_b32 s19, s3, 10
    s_add_u32 s21, s18, s19
    s_add_u32 s21, s21, {32*131072 - 16384}
    s_add_u32 s22, s21, {32*131072}''')
    for i in range(4): k(f's_add_u32 m0, s19, {8192*i}\ns_nop 0\nbuffer_load_dwordx4 v5, s[8:11], s21 offen lds\ns_add_u32 s21, s21, 8192')
    for i in range(4): k(f's_add_u32 m0, s19, {32768+8192*i}\ns_nop 0\nbuffer_load_dwordx4 v4, s[8:11], s22 offen lds\ns_add_u32 s22, s22, 8192')
    k('s_mov_b32 s24, 0xf149f2ca\nv_mov_b32 v6, s24\nv_lshlrev_b32 v7, 2, v2\nv_sub_u32 v7, v1, v7')
    k('s_cmp_eq_u32 s17, 0\ns_cselect_b32 s25, s24, 0\ns_cselect_b32 s26, s3, 8\nv_mov_b32 v8, s25')
    for i in range(16):
        kl = 8*(i//4) + i % 4
        k(f'v_cmp_le_i32 vcc, {kl}, v7\ns_nop 1\nv_cndmask_b32 v{S0+128+i}, v6, 0, vcc\nv_cndmask_b32 v{S0+i}, v8, v6, vcc')
    for b in range(1, 8):
        k(f's_add_u32 s27, s26, {b}\ns_cmp_lt_u32 s27, 8\ns_cselect_b32 s27, s24, 0')
        for i in range(16): k(f'v_mov_b32 v{S0+16*b+i}, s27')
    for i in range(32): k(f'v_mov_b32 v{OA+i}, 0')
    for i in range(4): k(f'v_mov_b32 v{ON+i}, 0x3f803f80')
    k(f'''v_lshrrev_b32 v9, 2, v1
    v_and_b32 v9, 3, v9
    v_xor_b32 v9, v9, v2
    v_lshlrev_b32 v9, 4, v9
    v_lshl_add_u32 v9, v1, 6, v9
    s_lshl_b32 s19, s3, 11
    v_add_u32 v9, s19, v9
    v_xor_b32 v10, 32, v9
    v_bfe_u32 v11, v0, 2, 2
    v_lshl_add_u32 v11, v2, 2, v11
    v_lshlrev_b32 v11, 6, v11
    v_bfe_u32 v12, v0, 4, 1
    v_lshl_add_u32 v11, v12, 5, v11
    v_and_b32 v12, 3, v0
    v_lshl_add_u32 v11, v12, 3, v11
    v_add_u32 v11, s19, v11
    s_waitcnt vmcnt(4)
    s_barrier''')
    def kread(b): k(f'ds_read_b128 {vr(KF+8*(b%4),4)}, v9 offset:{2048*b}\nds_read_b128 {vr(KF+8*(b%4)+4,4)}, v10 offset:{2048*b}')
    def vmax(b):
        s = S0+16*b
        if b == 0: k(f'v_max_f32 v13, v{s}, v{s+1}')
        for i in range(1 if b == 0 else 0, 8): k(f'v_max3_f32 v13, v{s+2*i}, v{s+2*i+1}, v13')
    for b in range(3): kread(b)
    for b in range(9):
        if b+3 < 9: kread(b+3)
        k(f's_waitcnt lgkmcnt({2*min(3, 8-b)})')
        for t in range(2): k(f'v_mfma_f32_32x32x16_bf16 {vr(S0+16*b,16)}, {vr(KF+8*(b%4)+4*t,4)}, {vr(QF+4*t,4)}, {vr(S0+16*b,16)}')
        if b == 2: k("s_nop 1")
        if b >= 2: vmax(b-2)
    k('s_waitcnt vmcnt(0)\ns_barrier')
    def vread(b):
        for t in range(2):
            for j in range(2): k(f'ds_read_b64_tr_b16 {vr(KF+8*(b%4)+4*t+2*j,2)}, v11 offset:{32768+2048*b+1024*t+512*j}')
    vread(0); vread(1); k('s_nop 3'); vmax(7); vmax(8)
    k(f'''v_mov_b32 v14, v13
    s_mov_b32 s28, 0x3e8293ee
    s_mov_b32 s29, s28
    v_permlane32_swap_b32 v14, v13
    v_max_f32 v13, v13, v14
    v_mul_f32_e64 v14, s28, -v13
    v_mov_b32 v15, v14''')
    for b in range(9):
        s = S0+16*b
        if b+2 < 9: vread(b+2)
        for i in range(8): k(f'v_pk_fma_f32 {vr(s+2*i,2)}, {vr(s+2*i,2)}, s[28:29], v[14:15]')
        for i in range(16): k(f'v_exp_f32 v{s+i}, v{s+i}')
        for i in range(8): k(f'v_cvt_pk_bf16_f32 v{s+i}, v{s+2*i}, v{s+2*i+1}')
        k(f's_waitcnt lgkmcnt({4*min(2, 8-b)})\ns_nop 0')
        for t in range(2):
            k(f'v_mfma_f32_32x32x16_bf16 {vr(OA,16)}, {vr(KF+8*(b%4)+4*t,4)}, {vr(s+4*t,4)}, {vr(OA,16)}')
            k(f'v_mfma_f32_32x32x16_bf16 {vr(LA,16)}, {vr(ON,4)}, {vr(s+4*t,4)}, {vr(LA,16)}')
    k(f'''v_lshlrev_b32 v3, 11, v1
    v_lshl_add_u32 v3, v2, 4, v3
    s_lshl_b32 s18, s17, 19
    s_lshl_b32 s19, s3, 16
    s_add_u32 s18, s18, s19
    s_lshl_b32 s19, s16, 6
    s_add_u32 s18, s18, s19
    s_nop 7
    v_rcp_f32 v13, v{LA}
    s_nop 0''')
    for i in range(16): k(f'v_mul_f32 v{OA+i}, v{OA+i}, v13')
    for i in range(8): k(f'v_cvt_pk_bf16_f32 v{16+i}, v{OA+2*i}, v{OA+2*i+1}')
    k(f'''s_nop 1
    v_permlane32_swap_b32 v16, v18
    v_permlane32_swap_b32 v17, v19
    v_permlane32_swap_b32 v20, v22
    v_permlane32_swap_b32 v21, v23
    buffer_store_dwordx4 v[16:19], v3, s[12:15], s18 offen
    buffer_store_dwordx4 v[20:23], v3, s[12:15], s18 offen offset:32
    {k.lab('end')}:
    s_endpgm''')
    return k
```

```python
from core import *
from k012 import unpack

def k_res(name, Kd, lda, offa, pw, szw, res_ptr, res_off, out_ptr, out_off, stats, NS=6):
    g = Gemm(name, 64, Kd, lda, 2048, 4, 1, NS, 'tr', 4, vgpr=128); k = g.k
    k.ptr(20, P_WS); k.ptr(22, pw); k.ptr(24, res_ptr); k.ptr(26, out_ptr); g.head(); k('s_waitcnt lgkmcnt(0)')
    k.srd(16, 24, res_off, 4*MB); k.srd(40, 26, out_off, 4*MB); k.srd(44, 20, ST, 16384)
    g.srds(20, offa, 0, 22, 0, szw)
    R = g.FREE
    g.pg16(13)
    k(f'''v_lshl_add_u32 v13, v1, 11, v13
    v_add_u32 v14, 32768, v13
    s_lshl_b32 s38, s4, 18
    s_lshl_b32 s6, s3, 16
    s_add_u32 s38, s38, s6
    s_lshl_b32 s6, s5, 7
    s_add_u32 s38, s38, s6''')
    for mt in range(2):
        for p in range(2): k(f'buffer_load_dwordx4 {vr(R+8*mt+4*p,4)}, v{13+mt}, s[16:19], s38 offen offset:{64*p}')
    g.csetup(); g.mainloop()
    k('s_waitcnt vmcnt(0)')
    T = g.FX
    for mt in range(2):
        for p in range(2):
            r = R+8*mt+4*p; c = g.acc(mt, 2*p); d = g.FY + 8*mt + 4*p
            k(f'v_permlane16_swap_b32 v{r}, v{r+2}\nv_permlane16_swap_b32 v{r+1}, v{r+3}')
            unpack(k, r, 4, T)
            for i in range(4): k(f'v_pk_add_f32 {vr(c+2*i,2)}, {vr(c+2*i,2)}, {vr(T+2*i,2)}')
            g.pack_pair(c, c+4, d)
            k(f'buffer_store_dwordx4 {vr(d,4)}, v{13+mt}, s[40:43], s38 offen offset:{64*p}')
            if stats:
                unpack(k, d, 4, T)
                for i in range(8):
                    if p == 0 and i == 0: k(f'v_mov_b32 v{4+mt}, v{T}\nv_mul_f32 v{6+mt}, v{T}, v{T}')
                    else: k(f'v_add_f32 v{4+mt}, v{4+mt}, v{T+i}\nv_fmac_f32 v{6+mt}, v{T+i}, v{T+i}')
    if stats:
        k(f'''v_lshrrev_b32 v8, 5, v0
        v_lshl_add_u32 v8, v8, 4, v1
        v_permlane32_swap_b32 v4, v5
        v_permlane32_swap_b32 v6, v7
        v_add_f32 v4, v4, v5
        v_add_f32 v6, v6, v7
        v_and_b32 v9, 1, v2
        v_lshlrev_b32 v9, 2, v9
        v_permlane16_swap_b32 v4, v6
        v_lshl_add_u32 v8, v8, 3, v9
        v_add_f32 v4, v4, v6
        s_lshl_b32 s6, s4, 10
        s_lshl_b32 s7, s3, 8
        s_add_u32 s6, s6, s7
        buffer_atomic_add_f32 v4, v8, s[44:47], s6 offen''')
    return g.finish()

def gelu4(k, c, t):
    for i in (0, 2): k(f'v_pk_mul_f32 {vr(t+i,2)}, {vr(c+i,2)}, {vr(c+i,2)}')
    for i in (0, 2): k(f'v_pk_fma_f32 {vr(t+i,2)}, {vr(t+i,2)}, s[48:49], v[10:11]')
    for i in (0, 2): k(f'v_pk_mul_f32 {vr(t+i,2)}, {vr(t+i,2)}, {vr(c+i,2)}')
    for i in range(4): k(f'v_exp_f32 v{t+i}, v{t+i}')
    k('s_nop 0')
    for i in (0, 2): k(f'v_pk_add_f32 {vr(t+i,2)}, {vr(t+i,2)}, 1.0 op_sel_hi:[1,0]')
    for i in range(4): k(f'v_rcp_f32 v{t+i}, v{t+i}')
    k('s_nop 0')
    for i in (0, 2): k(f'v_pk_mul_f32 {vr(c+i,2)}, {vr(c+i,2)}, {vr(t+i,2)}')

def rstats(k, s, q, inv):
    k(f'''v_mul_f32 v3, {inv}, v{s}
    v_mul_f32 v{q}, {inv}, v{q}
    v_fma_f32 v{q}, -v3, v3, v{q}
    v_max_f32 v{q}, 0, v{q}
    v_add_f32 v{q}, 0x3727c5ac, v{q}
    v_rsq_f32 v{s}, v{q}
    s_nop 0
    v_mul_f32_e64 v{q}, -v3, v{s}''')

def k_win(WR=2, NS=3):
    g = Gemm('win', 224, 1024, 2048, 7168, WR, 2, NS, 'tr', 8, extra_lds=3072, vgpr=256 if WR == 2 else 168); k = g.k
    MT, XL = g.MT, g.XL
    k.ptr(20, P_WS); k.ptr(22, P_WIN); k.ptr(24, P_DBG); g.head(); k('s_waitcnt lgkmcnt(0)')
    k.srd(16, 20, Z1, 16*MB); k.srd(44, 20, ST, 32768); k.srd(40, 20, CS, 16*3584*4); k.srd(52, 24, 0, 256)
    g.srds(20, H_, 0, 22, 0, 1024*7168)
    g.csetup()
    k(f's_mov_b32 s48, 0xbdd2d3e8\ns_mov_b32 s49, s48\ns_cmp_ge_u32 s5, 8\ns_cbranch_scc1 {k.lab("z2")}')
    g.mainloop(False, 'a')
    F = g.FX; RR = F; CC = F + 8; T = F + 36; D = F + 40
    k(f'''s_mul_i32 s6, s30, {MT*64}
    s_add_u32 s6, s6, {XL}
    v_lshl_add_u32 v4, v1, 2, s6
    s_mul_i32 s6, s31, 448
    s_add_u32 s6, s6, {XL+2048}
    v_lshl_add_u32 v5, v2, 4, s6
    v_mov_b32 v10, 0xc0135761
    v_mov_b32 v11, v10''')
    for mt in range(MT): k(f'ds_read_b32 v{RR+2*mt}, v4 offset:{64*mt}\nds_read_b32 v{RR+2*mt+1}, v4 offset:{1024+64*mt}')
    for nt in range(7): k(f'ds_read_b128 {vr(CC+4*nt,4)}, v5 offset:{64*nt}')
    k(f'''s_lshl_b32 s6, s4, 3
    s_mul_i32 s7, s30, {MT}
    s_add_u32 s6, s6, s7
    s_lshl_b32 s6, s6, 4
    s_lshl_b32 s7, s5, 1
    s_add_u32 s6, s6, s7
    s_add_u32 s6, s6, s31
    s_mul_i32 s6, s6, 3584
    v_lshlrev_b32 v6, 4, v0
    v_lshlrev_b32 v7, 3, v0
    s_waitcnt lgkmcnt(0)''')
    n = 0
    for mt in range(MT):
        r = vr(RR+2*mt, 2)
        for nt in range(7):
            c = g.acc(mt, nt)
            for i in (0, 2): k(f'v_pk_mul_f32 {vr(c+i,2)}, {vr(c+i,2)}, {r} op_sel_hi:[1,0]')
            for i in (0, 2): k(f'v_pk_fma_f32 {vr(c+i,2)}, {vr(CC+4*nt+i,2)}, {r}, {vr(c+i,2)} op_sel:[0,1,0]')
            gelu4(k, c, T)
            d = D + 4*(n % 4) + 2*(nt % 2)
            k(f'v_cvt_pk_bf16_f32 v{d}, v{c}, v{c+1}\nv_cvt_pk_bf16_f32 v{d+1}, v{c+2}, v{c+3}')
            if nt % 2: k(f'buffer_store_dwordx4 {vr(d-2,4)}, v6, s[16:19], s6 offen offset:{(nt//2)*1024}'); n += 1
            elif nt == 6: k(f'buffer_store_dwordx2 {vr(d,2)}, v7, s[16:19], s6 offen offset:3072'); n += 1
        k(f's_add_u32 s6, s6, {16*3584}')
    k('s_endpgm')
    k(f'{k.lab("z2")}:'); g.mainloop(True, 'b')
    R4 = F; N4 = F + 4*MT; CC = F + 8*MT; T = CC + 14; PQ = T + 4; D = PQ + (-PQ) % 4
    assert max(PQ + 8*MT, D + 16) <= k.vgpr
    k(f'''s_mul_i32 s6, s30, {MT*64}
    s_add_u32 s6, s6, {XL}
    v_lshl_add_u32 v4, v2, 4, s6
    s_mul_i32 s6, s31, 448
    s_add_u32 s6, s6, {XL+2048}
    v_lshl_add_u32 v5, v1, 2, s6
    v_mov_b32 v10, 0xc0135761
    v_mov_b32 v11, v10''')
    def rd_rn():
        for mt in range(MT): k(f'ds_read_b128 {vr(R4+4*mt,4)}, v4 offset:{64*mt}\nds_read_b128 {vr(N4+4*mt,4)}, v4 offset:{1024+64*mt}')
    rd_rn()
    for nt in range(7): k(f'ds_read_b32 v{CC+2*nt}, v5 offset:{64*nt}')
    k('s_waitcnt lgkmcnt(0)')
    for mt in range(MT):
        P, Q = PQ + 8*mt, PQ + 8*mt + 4
        for nt in range(7):
            c = g.acc(mt, nt)
            for i in (0, 2): k(f'v_pk_mul_f32 {vr(c+i,2)}, {vr(c+i,2)}, {vr(R4+4*mt+i,2)}')
            for i in (0, 2): k(f'v_pk_fma_f32 {vr(c+i,2)}, {vr(N4+4*mt+i,2)}, {vr(CC+2*nt,2)}, {vr(c+i,2)} op_sel_hi:[1,0,1]')
            gelu4(k, c, T)
            for i in (0, 2):
                if nt == 0: k(f'v_mov_b32 v{P+i}, v{c+i}\nv_mov_b32 v{P+i+1}, v{c+i+1}\nv_pk_mul_f32 {vr(Q+i,2)}, {vr(c+i,2)}, {vr(c+i,2)}')
                else: k(f'v_pk_add_f32 {vr(P+i,2)}, {vr(P+i,2)}, {vr(c+i,2)}\nv_pk_fma_f32 {vr(Q+i,2)}, {vr(c+i,2)}, {vr(c+i,2)}, {vr(Q+i,2)}')
    k(f'''v_bfe_u32 v6, v0, 3, 1
    v_lshlrev_b32 v6, 2, v6
    v_add_u32 v6, v6, v2
    v_lshlrev_b32 v6, 1, v6
    v_bfe_u32 v7, v0, 2, 1
    v_add_u32 v6, v6, v7
    v_lshlrev_b32 v6, 2, v6
    v_and_b32 v7, 3, v0
    v_add_lshl_u32 v6, v6, v7, 2
    s_mov_b32 s56, 0xaaaaaaaa
    s_mov_b32 s57, s56
    s_mov_b32 s58, 0xcccccccc
    s_mov_b32 s59, s58
    s_lshl_b32 s6, s4, 10
    s_mul_i32 s7, s30, {MT*128}
    s_add_u32 s6, s6, s7
    s_add_u32 s6, s6, 16384''')
    dpp = lambda d, a, m, bm: k(f'v_add_f32_dpp v{d}, v{a}, v{a} {m} row_mask:0xf bank_mask:{bm}')
    for i in range(MT//2):
        a, b = PQ + 16*i, PQ + 16*i + 8
        for j in range(8): dpp(a+j, a+j, 'row_ror:8', '0x3')
        for j in range(8): dpp(a+j, b+j, 'row_ror:8', '0xc')
        four = [a, a+1, a+4, a+5]
        for j in four: dpp(j, j, 'row_shl:4', '0x5')
        for j in four: dpp(j, j+2, 'row_shr:4', '0xa')
        for j in four: dpp(j, j, 'quad_perm:[2,3,0,1]', '0xf')
        for j in four: dpp(j, j, 'quad_perm:[1,0,3,2]', '0xf')
        k(f'''v_cndmask_b32 v{a}, v{a}, v{a+4}, s[56:57]
        v_cndmask_b32 v{a+1}, v{a+1}, v{a+5}, s[56:57]
        v_cndmask_b32 v{a}, v{a}, v{a+1}, s[58:59]
        buffer_atomic_add_f32 v{a}, v6, s[44:47], s6 offen offset:{256*i}''')
    k(f'''s_waitcnt vmcnt(0)
    s_barrier
    s_cmp_lg_u32 s3, 0
    s_cbranch_scc1 {k.lab('got')}
    s_lshl_b32 s7, s4, 2
    v_mov_b32 v7, 1
    s_mov_b64 exec, 1
    buffer_atomic_add v7, off, s[52:55], s7
    s_mov_b32 s37, 0x20000
    {k.lab('spin')}:
    buffer_load_dword v8, off, s[52:55], s7 sc1
    s_sub_u32 s37, s37, 1
    s_cmp_eq_u32 s37, 0
    s_cbranch_scc1 {k.lab('spun')}
    s_waitcnt vmcnt(0)
    v_readfirstlane_b32 s38, v8
    s_cmp_lt_u32 s38, 8
    s_cbranch_scc1 {k.lab('spin')}
    {k.lab('spun')}:
    s_mov_b64 exec, -1
    {k.lab('got')}:
    s_barrier
    v_and_b32 v6, {MT*16-1}, v0
    v_lshlrev_b32 v7, 3, v6
    v_mov_b32 v8, 0
    v_mov_b32 v9, 0
    buffer_atomic_add_f32 v8, v7, s[44:47], s6 offen sc0
    buffer_atomic_add_f32 v9, v7, s[44:47], s6 offen offset:4 sc0
    s_mul_i32 s7, s30, {MT*64}
    s_add_u32 s7, s7, {XL}
    v_lshl_add_u32 v6, v6, 2, s7''')
    g.pg16(12)
    k(f'''v_lshlrev_b32 v12, 4, v12
    v_lshl_add_u32 v12, v1, 4, v12
    v_add_u32 v13, 4096, v12
    s_sub_u32 s6, s5, 8
    s_lshl_b32 s6, s6, 1
    s_add_u32 s6, s6, s31
    s_lshl_b32 s6, s6, 6
    s_lshl_b32 s7, s4, 2
    s_add_u32 s6, s6, s7
    s_mul_i32 s7, s30, {MT//2}
    s_add_u32 s6, s6, s7
    s_mul_i32 s6, s6, 7168
    s_add_u32 s6, s6, {Z2-Z1}
    s_waitcnt vmcnt(0)''')
    rstats(k, 8, 9, '0x3a124925')
    k('ds_write_b32 v6, v8\nds_write_b32 v6, v9 offset:1024\ns_waitcnt lgkmcnt(0)')
    rd_rn(); k('s_waitcnt lgkmcnt(0)')
    n = 0
    for i in range(MT//2):
        for nt in range(7):
            for mt in (2*i, 2*i+1):
                c = g.acc(mt, nt)
                for j in (0, 2): k(f'v_pk_fma_f32 {vr(c+j,2)}, {vr(c+j,2)}, {vr(R4+4*mt+j,2)}, {vr(N4+4*mt+j,2)}')
            d = D + 4*(n % 4); n += 1
            g.pack_pair(g.acc(2*i, nt), g.acc(2*i+1, nt), d)
            k(f'buffer_store_dwordx4 {vr(d,4)}, v{12+nt//4}, s[16:19], s6 offen offset:{(nt % 4)*1024}')
        k('s_add_u32 s6, s6, 7168')
    def pre(ph):
        if ph == 0:
            k(f'''s_lshl_b32 s6, s3, 6
            v_add_lshl_u32 v24, s6, v0, 2
            v_lshlrev_b32 v25, 1, v24
            s_lshl_b32 s6, s4, 10
            buffer_load_dwordx2 v[26:27], v25, s[44:47], s6 offen
            s_mul_i32 s6, s5, 896''')
            for i in range(16): k(f'buffer_load_dword v{28+i}, v24, s[40:43], s6 offen\ns_add_u32 s6, s6, 14336')
        else:
            rstats(k, 26, 27, '0x3a800000')
            for i in range(1, 16): k(f'v_add_f32 v28, v28, v{28+i}')
            k(f'v_add_u32 v24, {XL}, v24\nds_write_b32 v24, v26\nds_write_b32 v24, v27 offset:1024\nds_write_b32 v24, v28 offset:2048\ns_waitcnt lgkmcnt(0)')
    return g.finish(pre)

def k_sp(WR=4, NS=5):
    g = Gemm('sp', 112, 2048, 4096, 0, WR, 1, NS, 'frag', 4, vgpr=192 if WR == 4 else 128); k = g.k
    MT = g.MT
    k.ptr(20, P_WS); k.ptr(22, P_WSP); k.ptr(24, P_BSP); g.head(); k('s_waitcnt lgkmcnt(0)')
    k.srd(16, 20, Z1, 8*MB); k.srd(40, 20, U_, 2048*3584); k.srd(44, 24, 0, 4096)
    g.srds(22, 0, 0, 20, Z2, 0)
    ZR = g.FREE; BB = ZR + 16*MT
    k(f'''s_lshl_b32 s38, s4, 3
    s_mul_i32 s7, s3, {MT}
    s_add_u32 s38, s38, s7
    s_lshl_b32 s6, s38, 4
    s_add_u32 s6, s6, s5
    s_mul_i32 s6, s6, 3584
    s_lshl_b32 s7, s38, 5
    v_lshlrev_b32 v13, 4, v0
    v_lshlrev_b32 v14, 3, v0
    v_lshlrev_b32 v15, 1, v1''')
    for mt in range(MT):
        for p in range(3): k(f'buffer_load_dwordx4 {vr(ZR+16*mt+4*p,4)}, v13, s[16:19], s6 offen offset:{1024*p}')
        k(f'buffer_load_dwordx2 {vr(ZR+16*mt+12,2)}, v14, s[16:19], s6 offen offset:3072\ns_add_u32 s6, s6, {16*3584}')
        k(f'buffer_load_ushort v{BB+2*mt}, v15, s[44:47], s7 offen offset:{32*mt}')
    g.csetup(); g.mainloop()
    g.pg16(4)
    k(f'''s_mov_b32 s7, 3584
    v_mad_u32_u24 v4, v1, s7, v4
    v_lshlrev_b32 v5, 3, v2
    v_mad_u32_u24 v5, v1, s7, v5
    s_mul_i32 s6, s38, {16*3584}
    s_mul_i32 s7, s5, 224
    s_add_u32 s6, s6, s7
    s_waitcnt vmcnt(0)''')
    T = g.FX; n = 0
    for mt in range(MT):
        k(f'v_lshlrev_b32 v{BB+2*mt}, 16, v{BB+2*mt}')
        for nt in range(7):
            c = g.acc(mt, nt)
            unpack(k, ZR+16*mt+2*nt, 2, T)
            for i in (0, 2): k(f'v_pk_add_f32 {vr(c+i,2)}, {vr(c+i,2)}, {vr(BB+2*mt,2)} op_sel_hi:[1,0]')
            for i in (0, 2): k(f'v_pk_mul_f32 {vr(c+i,2)}, {vr(c+i,2)}, {vr(T+i,2)}')
            d = T + 4 + 4*(n % 6)
            if nt % 2:
                g.pack_pair(c-4, c, d); n += 1
                k(f'buffer_store_dwordx4 {vr(d,4)}, v4, s[40:43], s6 offen offset:{(nt//2)*64}')
            elif nt == 6:
                k(f'v_cvt_pk_bf16_f32 v{d}, v{c}, v{c+1}\nv_cvt_pk_bf16_f32 v{d+1}, v{c+2}, v{c+3}'); n += 1
                k(f'buffer_store_dwordx2 {vr(d,2)}, v5, s[40:43], s6 offen offset:192')
        k(f's_add_u32 s6, s6, {16*3584}')
    return g.finish()
```

```python
import sys, json
from core import *
from k012 import *
from k3456 import *
def build(o):
    ks = [k_pre(), k_qkv(o.get('qWR', 2), o.get('qNS', 3)), k_attn(),
          k_res('wo', 1024, 2048, O_, P_WO, 2*MB, P_X, 0, P_WS, H_, True),
          k_win(o.get('wWR', 2)), k_sp(o.get('sWR', 4)),
          k_res('wout', 1792, 3584, U_, P_WOUT, 1792*2048, P_WS, H_, P_OUT, 0, False)]
    for i in range(o.get('empty', 0)):
        e = K(f'e{i}', 256, 256, 0, 32); e('s_endpgm'); ks.append(e)
    s = '; generated by gen/gen.py (hand-written generator)\n' + ''.join(k.launch() for k in ks)
    s += '.amdgcn_target "amdgcn-amd-amdhsa--gfx950"\n.text\n' + ''.join(k.text() for k in ks)
    s += '.section .rodata,"a"\n' + ''.join(k.desc() for k in ks)
    return s
if __name__ == '__main__':
    out = sys.argv[1] if len(sys.argv) > 1 else 'sequential_preLN__sliding_block__mixer_gmlp__prompt.s'
    o = json.loads(sys.argv[2]) if len(sys.argv) > 2 else {}
    open(out, 'w').write(build(o))
```

```python
MB = 1 << 20
XN, QKV, O_, H_, Z1, Z2, U_, CS, ST = 0, 4*MB, 16*MB, 20*MB, 24*MB, 32*MB, 40*MB, 56*MB, 57*MB
FL = ST + 32768; LS = ST + 98304; CS2 = CS + 524288; WP = Z1
S_X, S_WQKV, S_WO, S_WIN, S_WSP, S_BSP, S_WOUT, S_OUT, S_WS = 64, 66, 68, 72, 74, 76, 78, 80, 84
P_X, P_WQKV, P_WO, P_WIN, P_WSP, P_BSP, P_WOUT, P_OUT, P_DBG, P_WS = 0, 8, 16, 32, 40, 48, 56, 64, 72, 80

OPT = {}
class K:
    def __init__(s, name, grid, block, lds, vgpr):
        s.name, s.grid, s.block, s.lds, s.vgpr = name, grid, block, lds, vgpr
        s.L = []
    def __call__(s, txt):
        for l in txt.strip('\n').split('\n'):
            l = l.strip()
            if l: s.L.append(l if l.endswith(':') else '    ' + l)
    def lab(s, x): return f'L_{x}'
    def ptr(s, sreg, slot): s(f's_load_dwordx2 s[{sreg}:{sreg+1}], s[0:1], {slot}')
    def srd(s, d, p, off, size, soff=None):
        s(f's_add_u32 s{d}, s{p}, {off}\ns_addc_u32 s{d+1}, s{p+1}, 0')
        if soff is not None: s(f's_add_u32 s{d}, s{d}, s{soff}\ns_addc_u32 s{d+1}, s{d+1}, 0')
        s(f's_mov_b32 s{d+2}, {size}\ns_mov_b32 s{d+3}, 0x20000')
    def stamp(s, i):
        if OPT.get('ts'): s(f's_memtime s[88:89]\ns_memrealtime s[90:91]\ns_waitcnt lgkmcnt(0)\nv_writelane_b32 v255, s88, {2*i}\nv_writelane_b32 v255, s90, {2*i+1}')
    def stamp_out(s):
        if not OPT.get('ts'): return
        s.srd(88, 84, 60*MB, MB)
        s('s_lshl_b32 s92, s2, 3\ns_add_u32 s92, s92, s3\ns_lshl_b32 s92, s92, 8\nv_lshlrev_b32 v1, 2, v0\nbuffer_store_dword v255, v1, s[88:91], s92 offen')
    def uid(s, x): OPT['n'] = OPT.get('n', 0) + 1; return s.lab(f'{x}{OPT["n"]}')
    def arrive(s, ph):
        s(f'v_mov_b32 v3, 1\ns_waitcnt vmcnt(0)\ns_mov_b64 exec, 1\nds_add_u32 v254, v3 offset:{8*ph}\ns_mov_b64 exec, -1')
    def spin(s, off, val, t):
        lb = s.uid('spin')
        s(f'''{lb}:
        ds_read_b32 v{t}, v254 offset:{off}
        s_sub_u32 s37, s37, 1
        s_cselect_b32 s37, 0, s37
        s_cbranch_scc1 {lb}x
        s_waitcnt lgkmcnt(0)
        v_readfirstlane_b32 s6, v{t}
        s_cmp_ge_u32 s6, {val}
        s_cbranch_scc1 {lb}x
        s_sleep 1
        s_branch {lb}
        {lb}x:
        s_waitcnt lgkmcnt(0)''')
    def sync(s, steps, t, mask=None):
        o = s.uid('oth')
        s(f's_cmp_lg_u32 s3, 4\ns_cbranch_scc1 {o}\nv_and_b32 v{t+1}, 15, v0\nv_lshlrev_b32 v{t+1}, 2, v{t+1}\nv_mov_b32 v3, 1')
        for ph, grp, mem, n, *also in steps:
            lb = s.uid('poll')
            if n: s.spin(8*ph, n, t)
            for ph, grp, mem in also + [(ph, grp, mem)]: s(f'''s_lshl_b32 s6, s{grp}, 9
            s_add_u32 s6, s6, {ph*8192}
            s_lshl_b32 s7, s{mem}, 2
            s_add_u32 s7, s7, s6
            s_mov_b64 exec, 1
            buffer_store_dword v3, off, s[60:63], s7 sc1
            s_mov_b64 exec, -1''')
            s(f'''{lb}:
            buffer_load_dword v{t}, v{t+1}, s[60:63], s6 offen sc1
            s_waitcnt vmcnt(0)
            v_cmp_eq_u32 vcc, 1, v{t}
            s_sub_u32 s37, s37, 1
            s_cselect_b32 s37, 0, s37
            s_cbranch_scc1 {lb}x''')
            if mask: s(f's_or_b64 vcc, vcc, {mask}')
            s(f's_cmp_eq_u64 vcc, -1\ns_cbranch_scc1 {lb}x\ns_sleep {OPT.get("slp", 2)}\ns_branch {lb}\n{lb}x:\nds_write_b32 v254, v3 offset:{8*ph+4}')
        s(f's_branch {o}x\n{o}:'); s.spin(8*steps[-1][0]+4, 1, t); s(f'{o}x:')
    def text(s):
        n = s.name + '_kernel'
        return f'.globl {n}\n.p2align 8\n.type {n},@function\n{n}:\n' + '\n'.join(s.L) + '\n'
    def desc(s):
        return f'''.p2align 6
.amdhsa_kernel {s.name}_kernel
  .amdhsa_next_free_vgpr {s.vgpr}
  .amdhsa_next_free_sgpr 96
  .amdhsa_accum_offset {(s.vgpr+3)//4*4}
  .amdhsa_group_segment_fixed_size 0
  .amdhsa_kernarg_size 88
  .amdhsa_user_sgpr_count 2
  .amdhsa_user_sgpr_kernarg_segment_ptr 1
  .amdhsa_system_sgpr_workgroup_id_x 1
.end_amdhsa_kernel
'''
    def launch(s): return f'; @launch kernel={s.name}_kernel grid=({s.grid},1,1) block=({s.block},1,1) lds={s.lds}\n'

def vr(a, n=1): return f'v{a}' if n == 1 else f'v[{a}:{a+n-1}]'

class Gemm:
    def __init__(g, k, name, BN, Kd, lda, ldw, WR, WC, NS, wmode, tncol=None, segs=(), afrag=False):
        g.afrag = afrag
        g.BN, g.Kd, g.lda, g.ldw, g.WR, g.WC, g.NS, g.wmode = BN, Kd, lda, ldw, WR, WC, NS, wmode
        g.MT = 8//WR; g.NT = BN//16//WC; g.nk = Kd//64; g.tncol = tncol or BN*2; g.segs = segs
        g.STG = 16384 + BN*128; g.XL = g.STG*NS; g.k = k; g.name = name
        assert g.XL <= 163840
        g.ACC = 16; g.FX = g.ACC + g.MT*g.NT*4; g.FS = (g.MT+g.NT)*4; g.FY = g.FX + g.FS; g.FREE = g.FY + g.FS
    def lab(g, x): return g.k.lab(g.name + x)
    def acc(g, mt, nt): return g.ACC + (mt*g.NT + nt)*4
    def woffs(g):
        k = g.k; BN = g.BN
        npw = BN//8; nw = (npw+3)//4
        for i in range(nw):
            d = 8+i
            k(f's_lshl_b32 s6, s29, 6\ns_add_u32 s6, s6, {256*i}\nv_add_u32 v3, s6, v0')
            if g.wmode == 'frag': k(f'v_lshlrev_b32 v{d}, 4, v3'); continue
            c = BN//8; M = (65536+c-1)//c
            assert all((q*M) >> 16 == q//c for q in range(64*c))
            k(f'''s_mov_b32 s6, {M}
            v_mul_u32_u24 v20, s6, v3
            v_lshrrev_b32 v20, 16, v20
            v_mul_u32_u24 v21, {c}, v20
            v_sub_u32 v21, v3, v21
            v_bfe_u32 v22, v20, 3, 1''')
            if BN != 224: k('v_bfe_u32 v23, v20, 1, 1\nv_lshl_add_u32 v22, v22, 1, v23')
            k(f'v_lshlrev_b32 v22, 1, v22\nv_xor_b32 v21, v21, v22')
            k(f'v_mov_b32 v22, {g.segs[0][1] if g.segs else 0}')
            for th, dl in g.segs[1:]: k(f'v_cmp_le_u32 vcc, {th}, v21\nv_mov_b32 v23, {dl}\ns_nop 0\nv_cndmask_b32 v22, v22, v23, vcc')
            k(f'''v_lshl_add_u32 v21, v21, 4, v22
            s_mov_b32 s6, {g.ldw}
            v_mad_u32_u24 v{d}, v20, s6, v21''')
    def loader(g, pa, offa, pw, offw, szw, dep=None, depA=True, pre=None, st=None, tail=None, dep0=None):
        k = g.k; NS = g.NS; BN = g.BN
        k(f's_mul_i32 s6, s4, {128*g.lda}')
        k.srd(8, pa, offa, 128*g.lda, 6)
        if g.wmode == 'tr':
            k(f's_mul_i32 s6, s5, {g.tncol}'); k.srd(12, pw, offw, szw, 6); k(f's_sub_u32 s14, s14, s6')
        else:
            k(f's_mul_i32 s6, s5, {g.nk*BN*128}'); k.srd(12, pw, offw, g.nk*BN*128, 6)
        k(f'''v_lshrrev_b32 v3, 3, v0
        s_lshl_b32 s6, s29, 3
        v_add_u32 v3, s6, v3
        v_lshrrev_b32 v4, 1, v3
        v_xor_b32 v4, v4, v0
        v_and_b32 v4, 7, v4
        v_lshlrev_b32 v4, 4, v4
        s_mov_b32 s6, {g.lda}
        v_mad_u32_u24 v4, v3, s6, v4''')
        if g.afrag: k('s_lshl_b32 s6, s29, 10\nv_lshl_add_u32 v4, v0, 4, s6')
        for i in range(1, 4): k(f'v_add_u32 v{4+i}, {4096*i if g.afrag else 32*g.lda*i}, v4')
        npw = BN//8; nw = (npw+3)//4; g.woffs()
        wstep = 64*g.ldw if g.wmode == 'tr' else BN*128
        k(f's_lshl_b32 s32, s29, 10\ns_mov_b32 s33, 0\ns_mov_b32 s34, 0\ns_add_u32 s35, s32, {g.XL}')
        sa, sw = (' sc1' if dep and depA else ''), (' sc1' if dep0 or (dep and not depA) else '')
        if dep0: dep0()
        def isA(o):
            for i in range(4): k(f's_add_u32 m0, s32, {o+4096*i}\ns_nop 0\nbuffer_load_dwordx4 v{4+i}, s[8:11], s33 offen{sa} lds')
            k(f's_add_u32 s33, s33, {16384 if g.afrag else 128}')
        def isW(o, n):
            for i in range(n): k(f's_add_u32 m0, s32, {o+16384+4096*i}\ns_nop 0\nbuffer_load_dwordx4 v{8+i}, s[12:15], s34 offen{sw} lds')
            k(f's_add_u32 s34, s34, {wstep}')
        def issue(n):
            isA(0); isW(0, n)
            k(f's_add_u32 s32, s32, {g.STG}\ns_cmp_ge_u32 s32, s35\ns_cselect_b32 s6, {g.XL}, 0\ns_sub_u32 s32, s32, s6')
        variants = [(nw, 'a')]
        if npw % 4:
            k(f's_cmp_ge_u32 s29, {npw % 4}\ns_cbranch_scc1 {g.lab("ldb")}')
            variants.append((nw-1, 'b'))
        for n, t in variants:
            P = 4+n; nd = P
            k(f'{g.lab("ld"+t)}:')
            if dep:
                nd = 4 if depA else n
                for s in range(NS-1): isW(s*g.STG, n) if depA else isA(s*g.STG)
                dep()
                if st: k.stamp(st)
                if pre: pre(0)
                for s in range(NS-1): isA(s*g.STG) if depA else isW(s*g.STG, n)
            else:
                for s in range(NS-1): isA(s*g.STG); isW(s*g.STG, n)
            k(f's_add_u32 s32, s32, {g.STG*(NS-1)}')
            if pre: k(f's_waitcnt vmcnt({nd*(NS-1)})'); pre(1)
            for s in range(NS-2): k(f's_waitcnt vmcnt({nd*(NS-2-s)+P*s})\ns_barrier'); issue(n)
            k(f's_mov_b32 s36, {g.nk-2*NS+3}\n{g.lab("lp"+t)}:')
            k(f's_waitcnt vmcnt({P*(NS-2)})\ns_barrier'); issue(n)
            k(f's_sub_u32 s36, s36, 1\ns_cmp_lg_u32 s36, 0\ns_cbranch_scc1 {g.lab("lp"+t)}')
            xo = 0
            for s in range(NS-2, -1, -1):
                k(f's_waitcnt vmcnt({P*s if xo == 0 else xo})\ns_barrier')
                if tail and s == 1: xo = tail()
            if t == 'a' and len(variants) > 1: k(f's_branch {g.lab("ldx")}')
        k(f'{g.lab("ldx")}:\ns_barrier')
    def csetup(g):
        k = g.k; S = g.BN*2
        k(f's_and_b32 s31, s3, {g.WC-1}\ns_lshr_b32 s30, s3, {g.WC.bit_length()-1}')
        k(f'''v_lshrrev_b32 v3, 1, v1
        v_xor_b32 v3, v3, v2
        v_lshlrev_b32 v3, 4, v3
        v_lshl_add_u32 v3, v1, 7, v3
        s_mul_i32 s6, s30, {g.MT*2048}
        v_add_u32 v4, s6, v3
        v_xor_b32 v5, 64, v4''')
        if g.afrag: k(f's_mul_i32 s6, s30, {g.MT*1024}\nv_lshl_add_u32 v4, v0, 4, s6\nv_add_u32 v5, 8192, v4')
        if g.wmode == 'frag':
            g.NB = 1
            k(f'v_lshlrev_b32 v6, 4, v0\ns_mul_i32 s6, s31, {g.NT*1024}\ns_add_u32 s6, s6, 16384\nv_add_u32 v6, s6, v6')
        else:
            g.NB = min(g.NT, 2 if g.BN == 224 else 4)
            k(f'''v_lshrrev_b32 v10, 2, v1
            v_lshl_add_u32 v11, v2, 3, v10
            v_mul_u32_u24 v11, {S}, v11
            v_and_b32 v12, 3, v0
            v_lshl_add_u32 v11, v12, 3, v11
            v_add_u32 v11, 16384, v11
            v_and_b32 v12, 1, v2''')
            if g.BN != 224: k('v_lshrrev_b32 v10, 1, v10\nv_lshl_add_u32 v12, v12, 1, v10')
            for j in range(g.NB):
                k(f's_mul_i32 s6, s31, {g.NT}\ns_add_u32 s6, s6, {j}\nv_xor_b32 v10, s6, v12\nv_lshl_add_u32 v{6+j}, v10, 5, v11')
        for i in range(g.MT*g.NT*4): k(f'v_mov_b32 v{g.ACC+i}, 0')
        k('s_mov_b32 s32, 0')
    def reads(g, kk, F):
        r = []; S = g.BN*2
        ra = [f'ds_read_b128 {vr(F+4*mt,4)}, v{4+kk} offset:{mt*(1024 if g.afrag else 2048)}' for mt in range(g.MT)]
        for nt in range(g.NT):
            d = F + 4*(g.MT+nt)
            if g.wmode == 'frag': r.append(f'ds_read_b128 {vr(d,4)}, v6 offset:{(kk*(g.BN//16)+nt)*1024}')
            else:
                for h in range(2):
                    r.append(f'ds_read_b64_tr_b16 {vr(d+2*h,2)}, v{6+nt % g.NB} offset:{(32*kk+4*h)*S + (nt//g.NB)*g.NB*32}')
        return ra + r
    def mfmas(g, F, T):
        r = []
        for nt in range(g.NT):
            for mt in range(g.MT):
                a, w, c = vr(F+4*mt, 4), vr(F+4*(g.MT+nt), 4), vr(g.acc(mt, nt), 4)
                r.append(f'v_mfma_f32_16x16x32_bf16 {c}, {a}, {w}, {c}' if nt in T else f'v_mfma_f32_16x16x32_bf16 {c}, {w}, {a}, {c}')
        return r
    def mix(g, ms, rs, extra=()):
        k = g.k; rs = list(rs); extra = list(extra)
        per = -(-len(rs) // max(1, len(ms)-min(6, len(ms)//2)))
        for m in ms:
            k(m)
            if rs:
                for _ in range(per):
                    if rs: k(rs.pop(0))
            else:
                for _ in range(2):
                    if extra: k(extra.pop(0))
        for x in rs + extra: k(x)
    def mainloop(g, st, T=(), tag='', extra=(), vm=''):
        k = g.k
        adv = [f's_add_u32 s32, s32, 1', f's_cmp_eq_u32 s32, {g.NS}', f's_mov_b32 s6, {g.STG}', f's_cselect_b32 s6, {-(g.NS-1)*g.STG}, s6',
               f's_cselect_b32 s32, 0, s32'] + [f'v_add_u32 v{i}, s6, v{i}' for i in range(4, 6+g.NB)]
        k.stamp(st); k('s_barrier'); k.stamp(st+1)
        for r in g.reads(0, g.FX): k(r)
        k(f's_mov_b32 s36, {g.nk}\ns_branch {g.lab("mid"+tag)}\n.p2align 4\n{g.lab("loop"+tag)}:\ns_barrier')
        g.mix(g.mfmas(g.FY, T), g.reads(0, g.FX), extra)
        k(f'{g.lab("mid"+tag)}:\ns_waitcnt lgkmcnt(0)')
        g.mix(g.mfmas(g.FX, T), g.reads(1, g.FY), adv + ['s_sub_u32 s36, s36, 1', 's_cmp_lg_u32 s36, 0'])
        k(f's_waitcnt {vm}lgkmcnt(0)\ns_cbranch_scc1 {g.lab("loop"+tag)}\ns_barrier')
        for m in g.mfmas(g.FY, T): k(m)
        k('s_nop 7'); k.stamp(st+2)
    def pack_pair(g, c0, c1, d):
        g.k(f'''v_cvt_pk_bf16_f32 v{d}, v{c0}, v{c0+1}
        v_cvt_pk_bf16_f32 v{d+1}, v{c0+2}, v{c0+3}
        v_cvt_pk_bf16_f32 v{d+2}, v{c1}, v{c1+1}
        v_cvt_pk_bf16_f32 v{d+3}, v{c1+2}, v{c1+3}
        s_nop 1
        v_permlane16_swap_b32 v{d}, v{d+2}
        v_permlane16_swap_b32 v{d+1}, v{d+3}''')
    def pg16(g, d):
        g.k(f'v_and_b32 v{d}, 1, v2\nv_lshlrev_b32 v{d}, 5, v{d}\nv_lshrrev_b32 v3, 1, v2\nv_lshl_add_u32 v{d}, v3, 4, v{d}')
    def pkaddr(g, d):
        g.pg16(d); g.k(f'v_lshlrev_b32 v{d}, 4, v{d}\nv_lshl_add_u32 v{d}, v1, 4, v{d}')
```

```python
from core import *
def wave_sum(k, v, t):
    for r in (8, 4, 2, 1): k(f's_nop 1\nv_add_f32_dpp v{v}, v{v}, v{v} row_ror:{r} row_mask:0xf bank_mask:0xf')
    for p in (16, 32): k(f'v_mov_b32 v{t}, v{v}\ns_nop 1\nv_permlane{p}_swap_b32 v{t}, v{v}\nv_add_f32 v{v}, v{v}, v{t}')
def unpack(k, src, n, dst):
    for i in range(n): k(f'v_lshlrev_b32 v{dst+2*i}, 16, v{src+i}\nv_and_b32 v{dst+2*i+1}, 0xffff0000, v{src+i}')

def k_pre():
    k = K('pre', 112+512+3, 256, 8192, 96)
    k.ptr(4, P_X); k.ptr(6, P_WS); k.ptr(20, P_WIN); k.ptr(22, P_WQKV); k.ptr(28, P_WO)
    k(f'''v_lshrrev_b32 v1, 6, v0
    v_and_b32 v2, 63, v0
    v_readfirstlane_b32 s3, v1
    s_waitcnt lgkmcnt(0)
    s_cmp_lt_u32 s2, 112
    s_cbranch_scc1 {k.lab('cs')}
    s_cmp_ge_u32 s2, 624
    s_cbranch_scc1 {k.lab('zero')}''')
    k.srd(8, 4, 0, 4*MB); k.srd(12, 6, XN, 4*MB); k.srd(24, 22, 0, 6*MB); k.srd(32, 28, 0, 2*MB)
    k(f'''s_sub_u32 s16, s2, 112
    s_lshl_b32 s16, s16, 2
    s_add_u32 s16, s16, s3
    s_lshl_b32 s16, s16, 11
    v_lshlrev_b32 v3, 4, v2
    buffer_load_dwordx4 v[4:7], v3, s[8:11], s16 offen
    buffer_load_dwordx4 v[8:11], v3, s[8:11], s16 offen offset:1024
    s_lshl_b32 s17, s16, 1
    v_lshlrev_b32 v12, 6, v2
    buffer_load_dword v13, v12, s[24:27], s17 offen
    s_lshr_b32 s17, s16, 1
    buffer_load_dword v14, v3, s[32:35], s17 offen
    s_waitcnt vmcnt(2)''')
    unpack(k, 4, 8, 16)
    k('v_add_f32 v32, v16, v17')
    for i in range(18, 32): k(f'v_add_f32 v32, v32, v{i}')
    wave_sum(k, 32, 33)
    k('v_mul_f32 v32, 0x3a800000, v32')
    for i in range(16, 32): k(f'v_sub_f32 v{i}, v{i}, v32')
    k('v_mul_f32 v34, v16, v16')
    for i in range(17, 32): k(f'v_fmac_f32 v34, v{i}, v{i}')
    wave_sum(k, 34, 33)
    k('v_mov_b32 v35, 0x3727c5ac\nv_fmac_f32 v35, 0x3a800000, v34\nv_rsq_f32 v35, v35\ns_nop 0')
    for i in range(16, 32): k(f'v_mul_f32 v{i}, v{i}, v35')
    for i in range(8): k(f'v_cvt_pk_bf16_f32 v{4+i}, v{16+2*i}, v{17+2*i}')
    k('''buffer_store_dwordx4 v[4:7], v3, s[12:15], s16 offen
    buffer_store_dwordx4 v[8:11], v3, s[12:15], s16 offen offset:1024
    s_endpgm''')
    k(f'{k.lab("cs")}:')
    k.srd(8, 20, 0, 1024*7168); k.srd(12, 6, CS, 16*3584*4)
    k(f'''s_and_b32 s16, s2, 15
    s_lshr_b32 s17, s2, 4
    s_lshl_b32 s18, s16, 2
    s_add_u32 s18, s18, s3
    s_mul_i32 s18, s18, {16*7168}
    s_lshl_b32 s19, s17, 10
    s_add_u32 s18, s18, s19
    v_lshlrev_b32 v3, 4, v2''')
    for i in range(16): k(f'buffer_load_dwordx4 {vr(16+4*i,4)}, v3, s[8:11], s18 offen\ns_add_u32 s18, s18, 7168')
    for i in range(8): k(f'v_mov_b32 v{4+i}, 0')
    for i in range(16):
        k(f's_waitcnt vmcnt({15-i})')
        unpack(k, 16+4*i, 4, 80)
        for j in range(8): k(f'v_add_f32 v{4+j}, v{4+j}, v{80+j}')
    k(f'''v_lshlrev_b32 v3, 5, v0
    ds_write_b128 v3, v[4:7]
    ds_write_b128 v3, v[8:11] offset:16
    s_waitcnt lgkmcnt(0)
    s_barrier
    v_lshlrev_b32 v3, 3, v0
    ds_read_b64 v[4:5], v3
    ds_read_b64 v[6:7], v3 offset:2048
    ds_read_b64 v[8:9], v3 offset:4096
    ds_read_b64 v[10:11], v3 offset:6144
    s_mul_i32 s18, s16, {3584*4}
    s_lshl_b32 s19, s17, 11
    s_add_u32 s18, s18, s19
    s_waitcnt lgkmcnt(0)
    v_pk_add_f32 v[4:5], v[4:5], v[6:7]
    v_pk_add_f32 v[8:9], v[8:9], v[10:11]
    v_pk_add_f32 v[4:5], v[4:5], v[8:9]
    buffer_store_dwordx2 v[4:5], v3, s[12:15], s18 offen
    s_endpgm
    {k.lab('zero')}:
    s_cmp_gt_u32 s2, 626
    s_cbranch_scc1 {k.lab('end')}''')
    k.srd(12, 6, ST, 98304)
    k('v_lshlrev_b32 v3, 4, v0\ns_sub_u32 s16, s2, 624\ns_lshl_b32 s16, s16, 15')
    for i in range(4): k(f'v_mov_b32 v{4+i}, 0')
    for i in range(8): k(f'buffer_store_dwordx4 v[4:7], v3, s[12:15], s16 offen\ns_add_u32 s16, s16, 4096')
    k(f'{k.lab("end")}:\ns_endpgm')
    return k
```

```python
from core import *
from util import *
from k012 import unpack
ZS, TB, QS, SY, WSG = 122880, 151552, 98304, 155648, 114688

def attn(k):
    S0, OA, LA, QF, KF, ON = 32, 176, 192, 208, 216, 248
    k(f'''s_lshr_b32 s16, s3, 2
    s_and_b32 s17, s3, 3
    s_lshl_b32 s6, s5, 1
    s_add_u32 s18, s6, s16
    s_lshl_b32 s19, s18, 17
    s_lshl_b32 s26, s4, 2
    v_add_u32 v4, 2, v1
    v_subrev_u32 v4, s4, v4
    v_cmp_le_u32 s[56:57], 3, v4
    s_add_u32 s26, s26, s17
    v_and_b32 v1, 31, v0
    v_lshrrev_b32 v2, 5, v0''')
    k.srd(12, S_WS, QKV+32*131072, 131072, 19); k.srd(20, S_WS, QKV+64*131072, 131072, 19); k.srd(40, S_WS, O_, 4*MB)
    k('s_mov_b32 s24, 0xf149f2ca\nv_mov_b32 v6, s24\nv_lshlrev_b32 v7, 2, v2\nv_sub_u32 v7, v1, v7')
    k('s_cmp_lt_u32 s26, 8\ns_cselect_b32 s25, s24, 0\nv_mov_b32 v8, s25')
    for i in range(16):
        kl = 8*(i//4) + i % 4
        k(f'v_cmp_le_i32 vcc, {kl}, v7\ns_nop 1\nv_cndmask_b32 v{S0+128+i}, v6, 0, vcc\nv_cndmask_b32 v{S0+i}, v8, v6, vcc')
    for b in range(1, 8):
        k(f's_add_u32 s27, s26, {b}\ns_cmp_lt_u32 s27, 8\ns_cselect_b32 s27, s24, 0')
        for i in range(16): k(f'v_mov_b32 v{S0+16*b+i}, s27')
    for i in range(32): k(f'v_mov_b32 v{OA+i}, 0')
    for i in range(4): k(f'v_mov_b32 v{ON+i}, 0x3f803f80')
    k(f'''v_lshrrev_b32 v9, 2, v1
    v_and_b32 v9, 3, v9
    v_xor_b32 v9, v9, v2
    v_lshlrev_b32 v9, 4, v9
    v_lshl_add_u32 v9, v1, 6, v9
    s_mul_i32 s27, s16, 24576
    s_lshl_b32 s6, s17, 11
    s_add_u32 s7, s6, s27
    v_add_u32 v9, s7, v9
    v_xor_b32 v10, 32, v9
    v_bfe_u32 v11, v0, 2, 2
    v_lshl_add_u32 v11, v2, 2, v11
    v_lshlrev_b32 v11, 6, v11
    v_bfe_u32 v12, v0, 4, 1
    v_lshl_add_u32 v11, v12, 5, v11
    v_and_b32 v12, 3, v0
    v_lshl_add_u32 v11, v12, 3, v11
    s_add_u32 s7, s7, 49152
    v_add_u32 v11, s7, v11
    v_lshlrev_b32 v12, 6, v1
    v_lshl_add_u32 v12, v2, 4, v12
    s_lshl_b32 s28, s3, 11
    s_add_u32 s28, s28, {QS}
    v_add_u32 v12, s28, v12
    s_lshl_b32 s6, s17, 10
    s_add_u32 s27, s27, s6
    s_lshl_b32 s7, s4, 13
    s_add_u32 s6, s6, s7
    s_sub_u32 s6, s6, 16384
    v_lshlrev_b32 v4, 4, v0
    v_and_b32 v5, 48, v0
    v_xor_b32 v5, v4, v5
    v_add_u32 v4, s6, v4
    v_add_u32 v5, s6, v5''')
    k.sync([(0, 5, 4, 4)], 14, 's[56:57]'); k.stamp(4)
    for i in range(6): k(f's_add_u32 m0, s27, {4096*i}\ns_nop 0\nbuffer_load_dwordx4 v5, s[12:15], 0 offen sc1 lds\nv_add_u32 v5, 4096, v5')
    for i in range(6): k(f's_add_u32 m0, s27, {49152+4096*i}\ns_nop 0\nbuffer_load_dwordx4 v4, s[20:23], 0 offen sc1 lds\nv_add_u32 v4, 4096, v4')
    k('s_waitcnt vmcnt(6)\ns_barrier'); k.stamp(5)
    k(f'ds_read_b128 {vr(QF,4)}, v12\nds_read_b128 {vr(QF+4,4)}, v12 offset:32')
    def kread(b): k(f'ds_read_b128 {vr(KF+8*(b%4),4)}, v9 offset:{2048*b}\nds_read_b128 {vr(KF+8*(b%4)+4,4)}, v10 offset:{2048*b}')
    def vmax(b):
        s = S0+16*b
        if b == 0: k(f'v_max_f32 v13, v{s}, v{s+1}')
        for i in range(1 if b == 0 else 0, 8): k(f'v_max3_f32 v13, v{s+2*i}, v{s+2*i+1}, v13')
    for b in range(3): kread(b)
    for b in range(9):
        if b+3 < 9: kread(b+3)
        k(f's_waitcnt lgkmcnt({2*min(3, 8-b)})')
        for t in range(2): k(f'v_mfma_f32_32x32x16_bf16 {vr(S0+16*b,16)}, {vr(KF+8*(b%4)+4*t,4)}, {vr(QF+4*t,4)}, {vr(S0+16*b,16)}')
        if b == 2: k('s_nop 1')
        if b >= 2: vmax(b-2)
    k('s_waitcnt vmcnt(0)\ns_barrier')
    k.srd(12, S_WSP, 0, 8*MB); k.srd(20, S_WOUT, 0, 1792*2048)
    k('''s_lshl_b32 s6, s2, 3
    s_add_u32 s6, s6, s3
    s_lshl_b32 s7, s6, 11
    s_lshl_b32 s6, s6, 12
    v_lshlrev_b32 v4, 6, v0
    v_lshlrev_b32 v5, 5, v0
    buffer_load_dword v252, v4, s[12:15], s6 offen
    buffer_load_dword v253, v5, s[20:23], s7 offen''')
    k.srd(8, S_WS, WP, 7*MB); k.srd(44, S_WS, CS2, 16*16*896)
    k(f'''v_lshrrev_b32 v4, 4, v0
    v_bfe_u32 v5, v0, 2, 2
    v_lshl_add_u32 v5, v4, 3, v5
    v_mul_u32_u24 v5, 448, v5
    v_and_b32 v6, 3, v0
    v_lshl_add_u32 v5, v6, 3, v5
    v_and_b32 v6, 1, v4
    v_xor_b32 v6, s3, v6
    v_lshl_add_u32 v5, v6, 5, v5
    v_add_u32 v5, {WSG}, v5''')
    for j in range(2):
        for kk in range(2):
            for h in range(2): k(f'ds_read_b64_tr_b16 {vr(16+8*j+4*kk+2*h,2)}, v5 offset:{(32*kk+4*h)*448+256*j}')
    k(f'''s_lshl_b32 s6, s5, 4
    s_add_u32 s6, s6, s4
    s_mul_i32 s6, s6, 28672
    s_lshl_b32 s7, s3, 10
    s_add_u32 s6, s6, s7
    s_lshl_b32 s7, s4, 4
    s_add_u32 s7, s7, s5
    s_mul_i32 s7, s7, 896
    s_lshl_b32 s27, s3, 6
    s_add_u32 s7, s7, s27
    v_lshlrev_b32 v6, 4, v0
    v_add_u32 v7, 14336, v6
    v_and_b32 v8, 15, v0
    v_lshlrev_b32 v8, 2, v8
    s_waitcnt lgkmcnt(0)''')
    for j in range(2):
        for kk in range(2): k(f'v_mfma_f32_16x16x32_bf16 {vr(QF+4*j,4)}, {vr(ON,4)}, {vr(16+8*j+4*kk,4)}, {vr(QF+4*j,4) if kk else 0}')
    k(f'''buffer_store_dwordx4 v[16:19], v6, s[8:11], s6 offen sc1
    buffer_store_dwordx4 v[20:23], v7, s[8:11], s6 offen sc1
    s_add_u32 s6, s6, 8192
    s_nop 4
    s_mov_b64 exec, 0xffff
    buffer_store_dword v{QF}, v8, s[44:47], s7 offen sc1
    s_cmp_ge_u32 s3, 6
    s_cbranch_scc1 {k.lab('rp')}
    buffer_store_dword v{QF+4}, v8, s[44:47], s7 offen offset:512 sc1
    s_mov_b64 exec, -1
    buffer_store_dwordx4 v[24:27], v6, s[8:11], s6 offen sc1
    buffer_store_dwordx4 v[28:31], v7, s[8:11], s6 offen sc1
    {k.lab('rp')}:
    s_mov_b64 exec, -1''')
    def vread(b):
        for t in range(2):
            for j in range(2): k(f'ds_read_b64_tr_b16 {vr(KF+8*(b%4)+4*t+2*j,2)}, v11 offset:{2048*b+1024*t+512*j}')
    vread(0); vread(1); k('s_nop 3'); vmax(7); vmax(8)
    k(f'''v_mov_b32 v14, v13
    s_mov_b32 s24, 0x3e8293ee
    s_mov_b32 s25, s24
    v_permlane32_swap_b32 v14, v13
    v_max_f32 v13, v13, v14
    v_mul_f32_e64 v14, s24, -v13
    v_mov_b32 v15, v14''')
    for b in range(9):
        s = S0+16*b
        if b+2 < 9: vread(b+2)
        for i in range(8): k(f'v_pk_fma_f32 {vr(s+2*i,2)}, {vr(s+2*i,2)}, s[24:25], v[14:15]')
        for i in range(16): k(f'v_exp_f32 v{s+i}, v{s+i}')
        for i in range(8): k(f'v_cvt_pk_bf16_f32 v{s+i}, v{s+2*i}, v{s+2*i+1}')
        k(f's_waitcnt lgkmcnt({4*min(2, 8-b)})\ns_nop 0')
        for t in range(2):
            k(f'v_mfma_f32_32x32x16_bf16 {vr(OA,16)}, {vr(KF+8*(b%4)+4*t,4)}, {vr(s+4*t,4)}, {vr(OA,16)}')
            k(f'v_mfma_f32_32x32x16_bf16 {vr(LA,16)}, {vr(ON,4)}, {vr(s+4*t,4)}, {vr(LA,16)}')
    k(f'''v_lshrrev_b32 v4, 4, v1
    v_lshl_add_u32 v4, v4, 2, v2
    v_and_b32 v1, 15, v0
    v_lshl_add_u32 v4, v4, 4, v1
    v_lshlrev_b32 v4, 4, v4
    s_lshl_b32 s6, s4, 18
    s_lshl_b32 s7, s18, 13
    s_add_u32 s6, s6, s7
    s_lshl_b32 s7, s17, 11
    s_add_u32 s6, s6, s7
    v_lshrrev_b32 v2, 4, v0
    s_nop 7
    v_rcp_f32 v13, v{LA}
    s_nop 0''')
    for i in range(16): k(f'v_mul_f32 v{OA+i}, v{OA+i}, v13')
    for i in range(8): k(f'v_cvt_pk_bf16_f32 v{16+i}, v{OA+2*i}, v{OA+2*i+1}')
    k(f'''s_nop 1
    v_permlane32_swap_b32 v16, v18
    v_permlane32_swap_b32 v17, v19
    v_permlane32_swap_b32 v20, v22
    v_permlane32_swap_b32 v21, v23
    buffer_store_dwordx4 v[16:19], v4, s[40:43], s6 offen sc1
    buffer_store_dwordx4 v[20:23], v4, s[40:43], s6 offen offset:512 sc1''')
    k.stamp(6); k('s_barrier'); k.arrive(1)

def res_compute(g, st, res_ptr, res_off, out_ptr, out_off, stats):
    k = g.k; R = g.FREE; sc = ' sc1' if stats else ''
    k.srd(16, res_ptr, res_off, 4*MB); k.srd(40, out_ptr, out_off, 4*MB); k.srd(44, S_WS, ST, 32768)
    g.pg16(13)
    k(f'''v_lshl_add_u32 v13, v1, 11, v13
    v_add_u32 v14, 32768, v13
    s_lshl_b32 s38, s4, 18
    s_lshl_b32 s6, s3, 16
    s_add_u32 s38, s38, s6
    s_lshl_b32 s6, s5, 7
    s_add_u32 s38, s38, s6
    s_lshl_b32 s50, s4, 18
    s_lshl_b32 s6, s5, 14
    s_add_u32 s50, s50, s6
    s_lshl_b32 s6, s3, 11
    s_add_u32 s50, s50, s6
    s_add_u32 s51, s50, 8192''')
    g.pkaddr(15)
    rm = lambda mt, p, sr: f'v{13+mt}, s[{sr}:{sr+3}], s38 offen offset:{64*p}'
    pk = lambda mt, p, sr: f'v15, s[{sr}:{sr+3}], s{50+p} offen offset:{1024*mt} sc1'
    ld, so = (rm, pk) if stats else (pk, rm)
    for mt in range(2):
        for p in range(2): k(f'buffer_load_dwordx4 {vr(R+8*mt+4*p,4)}, {ld(mt, p, 16)}')
    g.csetup(); g.mainloop(st)
    k('s_waitcnt vmcnt(0)')
    T = g.FX
    for mt in range(2):
        for p in range(2):
            r = R+8*mt+4*p; c = g.acc(mt, 2*p); d = g.FY + 8*mt + 4*p
            k(f'v_permlane16_swap_b32 v{r}, v{r+2}\nv_permlane16_swap_b32 v{r+1}, v{r+3}')
            unpack(k, r, 4, T)
            for i in range(4): k(f'v_pk_add_f32 {vr(c+2*i,2)}, {vr(c+2*i,2)}, {vr(T+2*i,2)}')
            g.pack_pair(c, c+4, d)
            k(f'buffer_store_dwordx4 {vr(d,4)}, {so(mt, p, 40)}')
    if not stats: return
    for mt in range(2):
        unpack(k, g.FY + 8*mt, 8, T)
        k(f'v_pk_mul_f32 {vr(T+16,2)}, {vr(T,2)}, {vr(T,2)}')
        for i in range(1, 8): k(f'v_pk_fma_f32 {vr(T+16,2)}, {vr(T+2*i,2)}, {vr(T+2*i,2)}, {vr(T+16,2)}\nv_pk_add_f32 {vr(T,2)}, {vr(T,2)}, {vr(T+2*i,2)}')
        k(f'v_add_f32 v{4+mt}, v{T}, v{T+1}\nv_add_f32 v{6+mt}, v{T+16}, v{T+17}')
    k(f'''v_lshrrev_b32 v8, 5, v0
    v_lshl_add_u32 v8, v8, 4, v1
    v_permlane32_swap_b32 v4, v5
    v_permlane32_swap_b32 v6, v7
    v_add_f32 v4, v4, v5
    v_add_f32 v6, v6, v7
    v_and_b32 v9, 1, v2
    v_lshlrev_b32 v9, 2, v9
    v_permlane16_swap_b32 v4, v6
    v_lshl_add_u32 v8, v8, 3, v9
    v_add_f32 v4, v4, v6
    s_lshl_b32 s6, s4, 10
    s_lshl_b32 s7, s3, 8
    s_add_u32 s6, s6, s7
    buffer_atomic_add_f32 v4, v8, s[44:47], s6 offen''')
    k.arrive(2)

def win_compute(g, wc):
    k = g.k; nz = 4 - wc; Z = list(range(nz)); Y = list(range(nz, 7))
    g.mainloop(10, Z, 'ab'[wc])
    F = g.FX; R4 = F; N4 = F+16; CT = F+32; T = F+40; PQ = F+44; RR = F+76; CC = F+84
    k(f'''s_lshl_b32 s6, s30, 8
    s_add_u32 s6, s6, {TB}
    v_lshl_add_u32 v4, v2, 4, s6
    v_lshl_add_u32 v14, v1, 2, s6
    s_mov_b32 s6, {TB+1024+448*wc}
    v_lshl_add_u32 v5, v1, 2, s6
    v_lshl_add_u32 v15, v2, 4, s6
    v_mov_b32 v10, 0xc0135761
    v_mov_b32 v11, v10''')
    def rd_rn(o):
        for mt in range(4): k(f'ds_read_b128 {vr(R4+4*mt,4)}, v4 offset:{64*mt}\nds_read_b128 {vr(N4+4*mt,4)}, v4 offset:{o+64*mt}')
    rd_rn(512)
    for nt in Z: k(f'ds_read_b32 v{CT+2*nt}, v5 offset:{64*nt}')
    k('s_waitcnt lgkmcnt(0)')
    for mt in range(4): k(f'ds_read_b32 v{RR+2*mt}, v14 offset:{64*mt}\nds_read_b32 v{RR+2*mt+1}, v14 offset:{512+64*mt}')
    for nt in Y: k(f'ds_read_b128 {vr(CC+4*(nt-nz),4)}, v15 offset:{64*nt}')
    for mt in range(4):
        P, Q = PQ + 8*mt, PQ + 8*mt + 4
        for nt in Z:
            c = g.acc(mt, nt)
            for i in (0, 2): k(f'v_pk_mul_f32 {vr(c+i,2)}, {vr(c+i,2)}, {vr(R4+4*mt+i,2)}')
            for i in (0, 2): k(f'v_pk_fma_f32 {vr(c+i,2)}, {vr(N4+4*mt+i,2)}, {vr(CT+2*nt,2)}, {vr(c+i,2)} op_sel_hi:[1,0,1]')
            gelu4(k, c, T)
            for i in (0, 2):
                if nt == 0: k(f'v_mov_b32 v{P+i}, v{c+i}\nv_mov_b32 v{P+i+1}, v{c+i+1}\nv_pk_mul_f32 {vr(Q+i,2)}, {vr(c+i,2)}, {vr(c+i,2)}')
                else: k(f'v_pk_add_f32 {vr(P+i,2)}, {vr(P+i,2)}, {vr(c+i,2)}\nv_pk_fma_f32 {vr(Q+i,2)}, {vr(c+i,2)}, {vr(c+i,2)}, {vr(Q+i,2)}')
    k(f'''v_bfe_u32 v6, v0, 3, 1
    v_lshlrev_b32 v6, 2, v6
    v_add_u32 v6, v6, v2
    v_lshlrev_b32 v6, 1, v6
    v_bfe_u32 v7, v0, 2, 1
    v_add_u32 v6, v6, v7
    v_lshlrev_b32 v6, 2, v6
    v_and_b32 v7, 3, v0
    v_add_lshl_u32 v6, v6, v7, 2
    s_mov_b32 s56, 0xaaaaaaaa
    s_mov_b32 s57, s56
    s_mov_b32 s58, 0xcccccccc
    s_mov_b32 s59, s58
    s_lshl_b32 s38, s4, 10
    s_lshl_b32 s7, s30, 9
    s_add_u32 s38, s38, s7
    s_add_u32 s38, s38, 16384''')
    dpp = lambda d, a, m, bm: k(f'v_add_f32_dpp v{d}, v{a}, v{a} {m} row_mask:0xf bank_mask:{bm}')
    for i in range(2):
        a, b = PQ + 16*i, PQ + 16*i + 8
        for j in range(8): dpp(a+j, a+j, 'row_ror:8', '0x3')
        for j in range(8): dpp(a+j, b+j, 'row_ror:8', '0xc')
        four = [a, a+1, a+4, a+5]
        for j in four: dpp(j, j, 'row_shl:4', '0x5')
        for j in four: dpp(j, j+2, 'row_shr:4', '0xa')
        for j in four: dpp(j, j, 'quad_perm:[2,3,0,1]', '0xf')
        for j in four: dpp(j, j, 'quad_perm:[1,0,3,2]', '0xf')
        k(f'''v_cndmask_b32 v{a}, v{a}, v{a+4}, s[56:57]
        v_cndmask_b32 v{a+1}, v{a+1}, v{a+5}, s[56:57]
        v_cndmask_b32 v{a}, v{a}, v{a+1}, s[58:59]
        buffer_atomic_add_f32 v{a}, v6, s[44:47], s38 offen offset:{256*i}''')
    k(f's_mul_i32 s6, s30, {4*3584}\ns_add_u32 s6, s6, {ZS}\nv_lshl_add_u32 v14, v0, 3, s6\ns_waitcnt lgkmcnt(0)')
    def z1(mt):
        r = vr(RR+2*mt, 2)
        for nt in Y:
            c = g.acc(mt, nt)
            for i in (0, 2): k(f'v_pk_mul_f32 {vr(c+i,2)}, {vr(c+i,2)}, {r} op_sel_hi:[1,0]')
            for i in (0, 2): k(f'v_pk_fma_f32 {vr(c+i,2)}, {vr(CC+4*(nt-nz)+i,2)}, {r}, {vr(c+i,2)} op_sel:[0,1,0]')
            gelu4(k, c, T)
            k(f'v_cvt_pk_bf16_f32 v{c}, v{c}, v{c+1}\nv_cvt_pk_bf16_f32 v{c+1}, v{c+2}, v{c+3}')
            k(f'ds_write_b64 v14, {vr(c,2)} offset:{(mt*7 + nt - nz + 3*wc)*512}')
    k.stamp(13); z1(0); z1(1); k.arrive(3); z1(2)
    k.spin(28, 1, 6); k.stamp(14)
    k(f'''v_lshlrev_b32 v7, 3, v0
    buffer_load_dwordx2 v[8:9], v7, s[44:47], s38 offen sc1
    s_lshl_b32 s7, s3, 9
    s_add_u32 s7, s7, {TB+2048}
    v_lshl_add_u32 v6, v0, 2, s7
    v_lshl_add_u32 v4, v2, 4, s7''')
    g.pkaddr(12)
    k(f'''    s_lshl_b32 s39, s5, 6
    s_lshl_b32 s7, s4, 2
    s_add_u32 s39, s39, s7
    s_lshl_b32 s7, s30, 1
    s_add_u32 s39, s39, s7
    s_mul_i32 s39, s39, 7168
    s_add_u32 s39, s39, {4096*wc}''')
    z1(3)
    k('s_waitcnt vmcnt(0)'); rstats(k, 8, 9, '0x3a124925')
    k('ds_write_b32 v6, v8\nds_write_b32 v6, v9 offset:256\ns_waitcnt lgkmcnt(0)')
    rd_rn(256); k('s_waitcnt lgkmcnt(0)')
    n = 0
    for i in range(2):
        for nt in Z:
            for mt in (2*i, 2*i+1):
                c = g.acc(mt, nt)
                for j in (0, 2): k(f'v_pk_fma_f32 {vr(c+j,2)}, {vr(c+j,2)}, {vr(R4+4*mt+j,2)}, {vr(N4+4*mt+j,2)}')
            d = PQ + 4*n; n += 1
            g.pack_pair(g.acc(2*i, nt), g.acc(2*i+1, nt), d)
            k(f'buffer_store_dwordx4 {vr(d,4)}, v12, s[16:19], s39 offen offset:{nt*1024} sc1')
        k('s_add_u32 s39, s39, 7168')
    k.stamp(15); k.arrive(4)

def win_pre(k):
    def pre(ph):
        if ph == 0:
            k.srd(44, S_WS, ST, 32768); k.srd(40, S_WS, CS2, 16*16*896)
            k(f'''s_lshl_b32 s6, s29, 6
            v_add_u32 v24, s6, v0
            v_and_b32 v25, 127, v24
            v_lshlrev_b32 v23, 3, v25
            s_lshl_b32 s6, s4, 10
            buffer_load_dwordx2 v[26:27], v23, s[44:47], s6 offen sc1
            v_min_u32 v22, 223, v24
            v_lshlrev_b32 v22, 2, v22
            s_mul_i32 s6, s5, 896''')
            for i in range(16): k(f'buffer_load_dword v{28+i}, v22, s[40:43], s6 offen sc1\ns_add_u32 s6, s6, 14336')
        else:
            rstats(k, 26, 27, '0x3a800000')
            for i in range(1, 16): k(f'v_add_f32 v28, v28, v{28+i}')
            k(f'''s_mov_b32 s6, {TB}
            v_lshl_add_u32 v25, v25, 2, s6
            v_lshl_add_u32 v24, v24, 2, s6
            ds_write_b32 v25, v26
            ds_write_b32 v25, v27 offset:512
            ds_write_b32 v24, v28 offset:1024
            s_waitcnt lgkmcnt(0)''')
    return pre

def sp_compute(g):
    k = g.k; ZR = g.FREE; BB = ZR + 28
    k.srd(40, S_WS, U_, 2048*3584); k.srd(44, S_BSP, 0, 4096)
    k(f's_lshl_b32 s38, s4, 3\ns_lshl_b32 s7, s3, 1\ns_add_u32 s38, s38, s7\ns_lshl_b32 s7, s38, 5\nv_lshlrev_b32 v15, 1, v1')
    for mt in range(2): k(f'buffer_load_ushort v{BB+2*mt}, v15, s[44:47], s7 offen offset:{32*mt}')
    g.csetup(); g.mainloop(16)
    k(f's_mul_i32 s6, s3, 7168\ns_add_u32 s6, s6, {ZS}\nv_lshl_add_u32 v6, v0, 3, s6')
    for i in range(14): k(f'ds_read_b64 {vr(ZR+2*i,2)}, v6 offset:{512*i}')
    g.pkaddr(4)
    k(f'''v_and_b32 v5, 1, v2
    v_lshrrev_b32 v3, 1, v2
    v_lshl_add_u32 v5, v5, 2, v3
    v_lshl_add_u32 v5, v5, 4, v1
    v_lshlrev_b32 v5, 4, v5
    s_mul_i32 s6, s4, {128*3584}
    s_lshr_b32 s7, s5, 1
    s_mul_i32 s7, s7, {7*8192}
    s_add_u32 s6, s6, s7
    s_lshl_b32 s7, s3, 11
    s_add_u32 s6, s6, s7
    s_waitcnt vmcnt(0) lgkmcnt(0)
    v_lshlrev_b32 v{BB}, 16, v{BB}
    v_lshlrev_b32 v{BB+2}, 16, v{BB+2}
    s_bitcmp1_b32 s5, 0
    s_cbranch_scc1 {g.lab('odd')}''')
    T = g.FX
    def prep(mt, nt):
        c = g.acc(mt, nt)
        unpack(k, ZR+14*mt+2*nt, 2, T)
        for i in (0, 2): k(f'v_pk_add_f32 {vr(c+i,2)}, {vr(c+i,2)}, {vr(BB+2*mt,2)} op_sel_hi:[1,0]')
        for i in (0, 2): k(f'v_pk_mul_f32 {vr(c+i,2)}, {vr(c+i,2)}, {vr(T+i,2)}')
        return c
    for odd in range(2):
        d = T + 4
        for i in range(3):
            k(f's_add_u32 s7, s6, {(4*odd+i)*8192}')
            for mt in range(2):
                g.pack_pair(prep(mt, 2*i+odd), prep(mt, 2*i+odd+1), d)
                k(f'buffer_store_dwordx4 {vr(d,4)}, v4, s[40:43], s7 offen offset:{1024*mt} sc1'); d += 4
        g.pack_pair(prep(0, 6-6*odd), prep(1, 6-6*odd), d)
        k(f's_add_u32 s7, s6, {3*8192}\nbuffer_store_dwordx4 {vr(d,4)}, v5, s[40:43], s7 offen offset:{512*odd} sc1')
        k(f's_branch {g.lab("ex")}\n{g.lab("odd")}:' if odd == 0 else f'{g.lab("ex")}:')
    k.arrive(5)

def k_mega():
    k = K('sequential_preLN__sliding_block__mixer_gmlp__prompt', 256, 512, 163840, 256); o = OPT
    Q = Gemm(k, 'q', 192, 1024, 2048, 6144, 2, 2, o.get('qNS', 4), 'tr', 128, ((0, 0), (4, 1984), (8, 3968), (12, -128), (16, 1856), (20, 3840)))
    C = Gemm(k, 'c', 64, 1024, 2048, 2048, 4, 1, 6, 'tr', afrag=True)
    D = Gemm(k, 'd', 224, 1024, 2048, 0, 2, 2, 3, 'frag', afrag=True)
    DT = Gemm(k, 'dt', 224, 1024, 2048, 7168, 2, 2, 3, 'tr', 224, ((0, 3584), (8, -128), (14, 3488), (20, -224)), True)
    E = Gemm(k, 'e', 112, 2048, 4096, 0, 4, 1, 4, 'frag')
    F = Gemm(k, 'f', 64, 1792, 3584, 2048, 4, 1, 6, 'tr', afrag=True)
    xr = o.get('xr', 4); lx = xr.bit_length()-1; nxc = 16//(32//xr); lc = nxc.bit_length()-1
    k(f'''s_cmp_ge_u32 s2, 256
    s_cbranch_scc1 {k.lab('end')}
    s_load_dwordx16 s[64:79], s[0:1], 0
    s_load_dwordx4 s[80:83], s[0:1], 64
    s_load_dwordx2 s[84:85], s[0:1], 80
    v_lshrrev_b32 v1, 6, v0
    v_and_b32 v0, 63, v0
    v_readfirstlane_b32 s3, v1
    s_and_b32 s6, s2, 7
    s_lshr_b32 s7, s2, 3
    s_lshr_b32 s4, s6, {lc}
    s_lshl_b32 s4, s4, {lx}
    s_and_b32 s28, s7, {xr-1}
    s_add_u32 s4, s4, s28
    s_and_b32 s5, s6, {nxc-1}
    s_mul_i32 s5, s5, {32//xr}
    s_lshr_b32 s28, s7, {lx}
    s_add_u32 s5, s5, s28
    v_and_b32 v1, 15, v0
    v_lshrrev_b32 v2, 4, v0
    s_mov_b32 s37, 1000000
    v_mov_b32 v254, {SY}
    s_sub_u32 s29, s3, 4
    s_waitcnt lgkmcnt(0)''')
    k.srd(60, S_WS, FL, 65536)
    k(f's_cmp_lt_u32 s3, 4\ns_cbranch_scc1 {k.lab("cq")}')
    k.stamp(0)
    def qtail():
        lb = k.uid('dbg')
        k.srd(52, 82, 0, 256); k.srd(44, S_WS, LS, 16384); k.srd(40, S_WS, CS, 16*16*768)
        k(f'''{lb}:
        buffer_load_dword v16, off, s[52:55], 0 sc1
        s_sub_u32 s37, s37, 1
        s_cselect_b32 s37, 0, s37
        s_cbranch_scc1 {lb}x
        s_waitcnt vmcnt(0)
        v_readfirstlane_b32 s6, v16
        s_cmp_lt_u32 s6, 256
        s_cbranch_scc1 {lb}
        {lb}x:
        s_waitcnt vmcnt(0)
        s_lshl_b32 s6, s29, 6
        v_add_u32 v24, s6, v0
        v_and_b32 v25, 127, v24
        v_lshlrev_b32 v23, 3, v25
        s_lshl_b32 s6, s4, 10
        buffer_load_dwordx2 v[26:27], v23, s[44:47], s6 offen sc1
        v_min_u32 v22, 191, v24
        v_lshlrev_b32 v22, 2, v22
        s_mul_i32 s6, s5, 768''')
        for i in range(16): k(f'buffer_load_dword v{28+i}, v22, s[40:43], s6 offen sc1\ns_add_u32 s6, s6, {16*768}')
        DT.woffs()
        k(f's_mul_i32 s6, s5, 224'); k.srd(44, S_WIN, 0, 1024*7168, 6); k('s_sub_u32 s46, s46, s6'); k.srd(40, S_WO, 0, 2*MB)
        return 17
    Q.loader(S_X, 0, S_WQKV, 0, 1024*6144, tail=qtail)
    k('v_lshl_add_u32 v3, v1, 2, v254\nv_mov_b32 v4, 0\nds_write_b32 v3, v4\ns_waitcnt vmcnt(0)')
    for i in range(1, 16): k(f'v_add_f32 v28, v28, v{28+i}')
    k(f'''s_mov_b32 s6, {TB}
    v_lshl_add_u32 v25, v25, 2, s6
    v_lshl_add_u32 v24, v24, 2, s6
    ds_write_b32 v25, v26
    ds_write_b32 v25, v27 offset:512
    ds_write_b32 v24, v28 offset:1024
    s_mul_i32 s33, s4, {64*7168}
    s_lshl_b32 s32, s29, 10
    s_lshl_b32 s6, s2, 2
    s_add_u32 s6, s6, s29
    s_lshl_b32 s6, s6, 11
    v_lshlrev_b32 v4, 5, v0
    s_waitcnt lgkmcnt(0)
    s_barrier''')
    for i in range(7): k(f's_add_u32 m0, s32, {WSG+4096*i}\ns_nop 0\nbuffer_load_dwordx4 v{8+i}, s[44:47], s33 offen lds')
    k('buffer_load_dword v253, v4, s[40:43], s6 offen')
    k(f's_branch {k.lab("attn")}\n{k.lab("cq")}:')
    k.stamp(0)
    F0 = Q.FX
    k(f'v_lshrrev_b32 v13, 3, v0\nv_and_b32 v14, 7, v0\nv_lshlrev_b32 v14, 4, v14\ns_cmp_eq_u32 s3, 3\ns_cbranch_scc1 {k.lab("xs")}')
    k.srd(8, S_WQKV, 0, 1024*6144); k.srd(12, S_WS, CS, 16*16*768)
    k(f'''s_mov_b32 s6, 6144
    v_mad_u32_u24 v13, v13, s6, v14
    s_mul_i32 s6, s4, {64*6144}
    s_lshl_b32 s7, s3, 11
    s_add_u32 s6, s6, s7
    s_lshl_b32 s7, s5, 7
    s_add_u32 s6, s6, s7''')
    for i in range(8): k(f'buffer_load_dwordx4 {vr(F0+4*i,4)}, v13, s[8:11], s6 offen\ns_add_u32 s6, s6, {8*6144}')
    Q.csetup()
    A8, T8 = F0+64, F0+72
    for i in range(8):
        k(f's_waitcnt vmcnt({7-i})'); unpack(k, F0+4*i, 4, T8 if i else A8)
        if i:
            for j in range(4): k(f'v_pk_add_f32 {vr(A8+2*j,2)}, {vr(A8+2*j,2)}, {vr(T8+2*j,2)}')
    for j in range(8): k(f'v_add_f32_dpp v{A8+j}, v{A8+j}, v{A8+j} row_ror:8 row_mask:0xf bank_mask:0xf')
    for p in (16, 32):
        for j in range(8): k(f'v_mov_b32 v{T8+j}, v{A8+j}')
        for j in range(8): k(f'v_permlane{p}_swap_b32 v{T8+j}, v{A8+j}')
        for j in range(4): k(f'v_pk_add_f32 {vr(A8+2*j,2)}, {vr(A8+2*j,2)}, {vr(T8+2*j,2)}')
    k(f'''s_lshl_b32 s6, s4, 4
    s_add_u32 s6, s6, s5
    s_mul_i32 s6, s6, 768
    s_lshl_b32 s7, s3, 8
    s_add_u32 s6, s6, s7
    v_lshlrev_b32 v14, 1, v14
    s_mov_b64 exec, 0xff
    buffer_store_dwordx4 {vr(A8,4)}, v14, s[12:15], s6 offen sc1
    buffer_store_dwordx4 {vr(A8+4,4)}, v14, s[12:15], s6 offen offset:16 sc1
    s_branch {k.lab('qm')}
    {k.lab('xs')}:''')
    k.srd(8, S_X, 0, 4*MB); k.srd(12, S_WS, ST, 114688)
    k(f'v_lshl_add_u32 v14, v13, 11, v14\ns_lshl_b32 s28, s4, 4\ns_add_u32 s28, s28, s5\ns_lshl_b32 s6, s28, 14')
    for i in range(16): k(f'buffer_load_dwordx4 {vr(F0+4*i,4)}, v14, s[8:11], s6 offen offset:{128*i}')
    Q.csetup()
    k(f'''s_lshl_b32 s28, s28, 6
    v_lshlrev_b32 v14, 14, v2
    v_lshl_add_u32 v14, v1, 2, v14
    v_lshlrev_b32 v15, 13, v0
    s_lshl_b32 s6, s4, 9
    s_lshl_b32 s7, s5, 2
    s_add_u32 s6, s6, s7
    s_mov_b32 exec_hi, 0
    buffer_store_dword v16, v14, s[12:15], s28 offen sc1
    s_mov_b64 exec, 0xff
    buffer_store_dword v16, v15, s[60:63], s6 offen sc1
    s_mov_b64 exec, -1
    s_mov_b32 s6, 0x3f803f80''')
    for j in range(4): k(f'v_mov_b32 v{A8+j}, 0')
    for i in range(16):
        k(f's_waitcnt vmcnt({17-i})')
        for j in range(4): k(f'v_dot2_f32_bf16 v{A8+2*(j%2)}, v{F0+4*i+j}, s6, v{A8+2*(j%2)}\nv_dot2_f32_bf16 v{A8+1+2*(j%2)}, v{F0+4*i+j}, v{F0+4*i+j}, v{A8+1+2*(j%2)}')
    k(f's_nop 2\nv_pk_add_f32 {vr(A8,2)}, {vr(A8,2)}, {vr(A8+2,2)}')
    for m in ('quad_perm:[1,0,3,2]', 'quad_perm:[2,3,0,1]', 'row_half_mirror'):
        k('s_nop 1')
        for j in range(2): k(f'v_add_f32_dpp v{A8+j}, v{A8+j}, v{A8+j} {m} row_mask:0xf bank_mask:0xf')
    rstats(k, A8, A8+1, '0x3a800000')
    k(f'''v_lshlrev_b32 v13, 3, v13
    s_add_u32 s28, s28, {LS-ST}
    s_mov_b32 exec_lo, 0x01010101
    s_mov_b32 exec_hi, 0x01010101
    buffer_store_dwordx2 {vr(A8,2)}, v13, s[12:15], s28 offen sc1
    {k.lab('qm')}:
    s_mov_b64 exec, -1
    v_mov_b32 v15, 1
    s_cmp_eq_u32 s3, 0
    s_cselect_b32 s39, {Q.nk-3}, -1''')
    k.srd(52, 82, 0, 256); k.srd(16, S_WS, QKV, 12*MB)
    Q.mainloop(1, extra=[f's_cmp_lg_u32 s36, {Q.nk-2}\ns_cbranch_scc1 {k.lab("nw")}\ns_waitcnt vmcnt(0)\n{k.lab("nw")}:', f's_cmp_lg_u32 s36, s39\ns_cbranch_scc1 {k.lab("na")}\ns_mov_b64 exec, 1\nbuffer_atomic_add v15, off, s[52:55], 0\ns_mov_b64 exec, -1\n{k.lab("na")}:'])
    RR, CC = F0+48, F0+56
    k(f'''s_barrier
    s_lshl_b32 s6, s30, 8
    s_add_u32 s6, s6, {TB}
    v_lshl_add_u32 v6, v1, 2, s6
    s_lshl_b32 s6, s31, 7
    s_add_u32 s6, s6, {TB+1024}
    v_lshl_add_u32 v7, v2, 4, s6''')
    for mt in range(4): k(f'ds_read_b32 v{RR+2*mt}, v6 offset:{64*mt}\nds_read_b32 v{RR+2*mt+1}, v6 offset:{512+64*mt}')
    for nt in range(6): k(f'ds_read_b128 {vr(CC+4*nt,4)}, v7 offset:{256*(nt//2)+64*(nt%2)}')
    Q.pg16(4)
    k(f'''v_lshl_add_u32 v4, v1, 6, v4
    s_lshl_b32 s6, s5, 1
    s_add_u32 s6, s6, s31
    s_lshl_b32 s6, s6, 17
    s_lshl_b32 s7, s4, 13
    s_add_u32 s6, s6, s7
    s_lshl_b32 s7, s30, 12
    s_add_u32 s6, s6, s7
    s_lshl_b32 s28, s31, 13
    s_add_u32 s7, s7, s28
    s_add_u32 s7, s7, {QS}
    v_add_u32 v5, s7, v4
    s_waitcnt lgkmcnt(0)''')
    n = 0
    for p in (1, 2, 0):
        k(f's_add_u32 s6, s6, {32*131072}')
        for mt in range(4):
            d = Q.FX + 4*n; n += 1; c = Q.acc(mt, 2*p); r = vr(RR+2*mt, 2)
            for i in range(0, 8, 2): k(f'v_pk_mul_f32 {vr(c+i,2)}, {vr(c+i,2)}, {r} op_sel_hi:[1,0]')
            for i in range(0, 8, 2): k(f'v_pk_fma_f32 {vr(c+i,2)}, {vr(CC+8*p+i,2)}, {r}, {vr(c+i,2)} op_sel:[0,1,0]')
            Q.pack_pair(Q.acc(mt, 2*p), Q.acc(mt, 2*p+1), d)
            k(f'buffer_store_dwordx4 {vr(d,4)}, v4, s[16:19], s6 offen offset:{mt*1024} sc1' if p else f'ds_write_b128 v5, {vr(d,4)} offset:{mt*1024}')
    k.arrive(0)
    k(f'{k.lab("attn")}:')
    attn(k)
    k(f's_cmp_lt_u32 s3, 4\ns_cbranch_scc1 {k.lab("cc")}')
    C.loader(S_WS, O_, S_WO, 0, 2*MB, lambda: k.sync([(1, 4, 5, 8, (6, 5, 4))], 16), st=7)
    D.loader(S_WS, H_, S_WS, WP, 0, lambda: k.sync([(2, 4, 5, 4)], 16), pre=win_pre(k), st=10, dep0=lambda: k.sync([(6, 5, 4, 0)], 16))
    E.loader(S_WSP, 0, S_WS, Z2, 0, lambda: k.sync([(3, 4, 5, 4), (4, 5, 4, 4)], 16), depA=False, st=16)
    F.loader(S_WS, U_, S_WOUT, 0, 1792*2048, lambda: k.sync([(5, 4, 5, 4)], 16), st=19)
    k.stamp_out(); k(f's_endpgm\n{k.lab("cc")}:')
    res_compute(C, 7, S_X, 0, S_WS, H_, True)
    k.srd(16, S_WS, Z2, 8*MB)
    D.csetup()
    k(f's_mov_b32 s48, 0xbdd2d3e8\ns_mov_b32 s49, s48\ns_cmp_eq_u32 s31, 1\ns_cbranch_scc1 {k.lab("d1")}')
    win_compute(D, 0); k(f's_branch {k.lab("ce")}\n{k.lab("d1")}:'); win_compute(D, 1)
    k(f'{k.lab("ce")}:')
    sp_compute(E)
    res_compute(F, 19, S_WS, H_, S_OUT, 0, False)
    if o.get('ts'): k('s_waitcnt vmcnt(0)'); k.stamp(22)
    k.stamp_out(); k(f'{k.lab("end")}:\ns_endpgm')
    return k
```

```python
from core import *
def gelu4(k, c, t):
    for i in (0, 2): k(f'v_pk_mul_f32 {vr(t+i,2)}, {vr(c+i,2)}, {vr(c+i,2)}')
    for i in (0, 2): k(f'v_pk_fma_f32 {vr(t+i,2)}, {vr(t+i,2)}, s[48:49], v[10:11]')
    for i in (0, 2): k(f'v_pk_mul_f32 {vr(t+i,2)}, {vr(t+i,2)}, {vr(c+i,2)}')
    for i in range(4): k(f'v_exp_f32 v{t+i}, v{t+i}')
    k('s_nop 0')
    for i in (0, 2): k(f'v_pk_add_f32 {vr(t+i,2)}, {vr(t+i,2)}, 1.0 op_sel_hi:[1,0]')
    for i in range(4): k(f'v_rcp_f32 v{t+i}, v{t+i}')
    k('s_nop 0')
    for i in (0, 2): k(f'v_pk_mul_f32 {vr(c+i,2)}, {vr(c+i,2)}, {vr(t+i,2)}')

def rstats(k, s, q, inv):
    k(f'''v_mul_f32 v3, {inv}, v{s}
    v_mul_f32 v{q}, {inv}, v{q}
    v_fma_f32 v{q}, -v3, v3, v{q}
    v_max_f32 v{q}, 0, v{q}
    v_add_f32 v{q}, 0x3727c5ac, v{q}
    v_rsq_f32 v{s}, v{q}
    s_nop 0
    v_mul_f32_e64 v{q}, -v3, v{s}''')
```

```python
import sys, json, re
from core import *
from k012 import *
from mega import *
def build(o):
    OPT.update(o)
    ks = [k_mega()]
    for i in range(o.get('empty', 0)):
        e = K(f'e{i}', 256, 256, 0, 32); e('s_endpgm'); ks.append(e)
    s = '; generated by gen/gen.py (hand-written generator)\n' + (ks[0].launch() if o.get('ts') or o.get('list') else re.sub(r'kernel=\S+ ', '', ks[0].launch()))
    s += '.amdgcn_target "amdgcn-amd-amdhsa--gfx950"\n.text\n' + ''.join(k.text() for k in ks)
    s += '.section .rodata,"a"\n' + ''.join(k.desc() for k in ks)
    return s
if __name__ == '__main__':
    out = sys.argv[1] if len(sys.argv) > 1 else 'sequential_preLN__sliding_block__mixer_gmlp__prompt.s'
    o = json.loads(sys.argv[2]) if len(sys.argv) > 2 else {}
    open(out, 'w').write(build(o))
```

```python
MB = 1 << 20
XN, QKV, O_, H_, Z1, Z2, U_, CS, ST = 0, 4*MB, 16*MB, 20*MB, 24*MB, 32*MB, 40*MB, 56*MB, 57*MB
FL = ST + 32768; LS = ST + 98304; CS2 = CS + 524288; WP = Z1
S_X, S_WQKV, S_WO, S_WIN, S_WSP, S_BSP, S_WOUT, S_OUT, S_WS = 64, 66, 68, 72, 74, 76, 78, 80, 84
P_X, P_WQKV, P_WO, P_WIN, P_WSP, P_BSP, P_WOUT, P_OUT, P_DBG, P_WS = 0, 8, 16, 32, 40, 48, 56, 64, 72, 80

OPT = {}
class K:
    def __init__(s, name, grid, block, lds, vgpr):
        s.name, s.grid, s.block, s.lds, s.vgpr = name, grid, block, lds, vgpr
        s.L = []
    def __call__(s, txt):
        for l in txt.strip('\n').split('\n'):
            l = l.strip()
            if l: s.L.append(l if l.endswith(':') else '    ' + l)
    def lab(s, x): return f'L_{x}'
    def ptr(s, sreg, slot): s(f's_load_dwordx2 s[{sreg}:{sreg+1}], s[0:1], {slot}')
    def srd(s, d, p, off, size, soff=None):
        s(f's_add_u32 s{d}, s{p}, {off}\ns_addc_u32 s{d+1}, s{p+1}, 0')
        if soff is not None: s(f's_add_u32 s{d}, s{d}, s{soff}\ns_addc_u32 s{d+1}, s{d+1}, 0')
        s(f's_mov_b32 s{d+2}, {size}\ns_mov_b32 s{d+3}, 0x20000')
    def stamp(s, i):
        if OPT.get('ts'): s(f's_memtime s[88:89]\ns_memrealtime s[90:91]\ns_waitcnt lgkmcnt(0)\nv_writelane_b32 v255, s88, {2*i}\nv_writelane_b32 v255, s90, {2*i+1}')
    def stamp_out(s):
        if not OPT.get('ts'): return
        s.srd(88, 84, 60*MB, MB)
        s('s_lshl_b32 s92, s2, 3\ns_add_u32 s92, s92, s3\ns_lshl_b32 s92, s92, 8\nv_lshlrev_b32 v1, 2, v0\nbuffer_store_dword v255, v1, s[88:91], s92 offen')
    def prefetch(s, p, off, sz, nwv=4, wv=29):
        per = sz // (256*nwv); n = -(-per // 4096); st = per // n // 64
        s.srd(96, p, off, sz)
        s(f's_mul_i32 s6, s2, {nwv}\ns_add_u32 s6, s6, s{wv}\ns_mul_i32 s6, s6, {per}\nv_mul_u32_u24 v252, {st}, v0')
        for i in range(n): s(f'buffer_load_dword v253, v252, s[96:99], s6 offen offset:{i*st*64}')
        return n
    def uid(s, x): OPT['n'] = OPT.get('n', 0) + 1; return s.lab(f'{x}{OPT["n"]}')
    def arrive(s, ph):
        s(f'v_mov_b32 v3, 1\ns_waitcnt vmcnt(0)\ns_mov_b64 exec, 1\nds_add_u32 v254, v3 offset:{8*ph}\ns_mov_b64 exec, -1')
    def spin(s, off, val, t):
        lb = s.uid('spin')
        s(f'''{lb}:
        ds_read_b32 v{t}, v254 offset:{off}
        s_sub_u32 s37, s37, 1
        s_cselect_b32 s37, 0, s37
        s_cbranch_scc1 {lb}x
        s_waitcnt lgkmcnt(0)
        v_readfirstlane_b32 s6, v{t}
        s_cmp_ge_u32 s6, {val}
        s_cbranch_scc1 {lb}x
        s_sleep 1
        s_branch {lb}
        {lb}x:
        s_waitcnt lgkmcnt(0)''')
    def publish(s, ph, grp, mem):
        o = s.uid('pub')
        s(f's_cmp_lg_u32 s3, 4\ns_cbranch_scc1 {o}\ns_lshl_b32 s6, s{grp}, 7\ns_add_u32 s6, s6, s{mem}\ns_lshl_b32 s6, s6, 2\ns_add_u32 s6, s6, {ph*8192}\nv_mov_b32 v3, 1\ns_mov_b64 exec, 1\nbuffer_store_dword v3, off, s[60:63], s6 sc1\ns_mov_b64 exec, -1\n{o}:')
    def sync(s, steps, t, mask=None):
        o = s.uid('oth')
        s(f's_cmp_lg_u32 s3, 4\ns_cbranch_scc1 {o}\nv_and_b32 v{t+1}, 15, v0\nv_lshlrev_b32 v{t+1}, 2, v{t+1}')
        for ph, grp, mem, n in steps:
            lb = s.uid('poll')
            if n: s.spin(8*ph, n, t); s.publish(ph, grp, mem)
            s(f's_lshl_b32 s6, s{grp}, 9\ns_add_u32 s6, s6, {ph*8192}\n{lb}:\nbuffer_load_dword v{t}, v{t+1}, s[60:63], s6 offen sc1')
            s(f's_sub_u32 s37, s37, 1\ns_cselect_b32 s37, 0, s37\ns_cbranch_scc1 {lb}x\ns_waitcnt vmcnt(0)\nv_cmp_eq_u32 vcc, 1, v{t}')
            if mask: s(f's_or_b64 vcc, vcc, {mask}')
            s(f's_cmp_eq_u64 vcc, -1\ns_cbranch_scc1 {lb}x\ns_sleep {OPT.get("slp", 2)}\ns_branch {lb}\n{lb}x:\nds_write_b32 v254, v254 offset:{8*ph+4}')
        s(f's_branch {o}x\n{o}:'); s.spin(8*steps[-1][0]+4, 1, t)
        s(f'{o}x:')
    def text(s):
        n = s.name + '_kernel'
        return f'.globl {n}\n.p2align 8\n.type {n},@function\n{n}:\n' + '\n'.join(s.L) + '\n'
    def desc(s):
        return f'''.p2align 6
.amdhsa_kernel {s.name}_kernel
  .amdhsa_next_free_vgpr {s.vgpr}
  .amdhsa_next_free_sgpr 102
  .amdhsa_accum_offset {(s.vgpr+3)//4*4}
  .amdhsa_group_segment_fixed_size 0
  .amdhsa_kernarg_size 88
  .amdhsa_user_sgpr_count 2
  .amdhsa_user_sgpr_kernarg_segment_ptr 1
  .amdhsa_system_sgpr_workgroup_id_x 1
.end_amdhsa_kernel
'''
    def launch(s): return f'; @launch kernel={s.name}_kernel grid=({s.grid},1,1) block=({s.block},1,1) lds={s.lds}\n'

def vr(a, n=1): return f'v{a}' if n == 1 else f'v[{a}:{a+n-1}]'

class Gemm:
    def __init__(g, k, name, BN, Kd, lda, ldw, WR, WC, NS, wmode, tncol=None, segs=(), afrag=False):
        g.afrag = afrag
        g.BN, g.Kd, g.lda, g.ldw, g.WR, g.WC, g.NS, g.wmode = BN, Kd, lda, ldw, WR, WC, NS, wmode
        g.MT = 8//WR; g.NT = BN//16//WC; g.nk = Kd//64; g.tncol = tncol or BN*2; g.segs = segs
        g.STG = 16384 + BN*128; g.XL = g.STG*NS; g.k = k; g.name = name
        assert g.XL <= 163840
        g.ACC = 16; g.FX = g.ACC + g.MT*g.NT*4; g.FS = (g.MT+g.NT)*4; g.FY = g.FX + g.FS; g.FREE = g.FY + g.FS
    def lab(g, x): return g.k.lab(g.name + x)
    def acc(g, mt, nt): return g.ACC + (mt*g.NT + nt)*4
    def woffs(g, dst=range(8, 16)):
        k = g.k; BN = g.BN
        npw = BN//8; nw = (npw+3)//4
        for i in range(nw):
            d = dst[i]
            k(f's_lshl_b32 s6, s29, 6\ns_add_u32 s6, s6, {256*i}\nv_add_u32 v3, s6, v0')
            if g.wmode == 'frag': k(f'v_lshlrev_b32 v{d}, 4, v3'); continue
            c = BN//8; M = (65536+c-1)//c
            assert all((q*M) >> 16 == q//c for q in range(64*c))
            k(f'''s_mov_b32 s6, {M}
            v_mul_u32_u24 v20, s6, v3
            v_lshrrev_b32 v20, 16, v20
            v_mul_u32_u24 v21, {c}, v20
            v_sub_u32 v21, v3, v21
            v_bfe_u32 v22, v20, 3, 1''')
            if BN != 224: k('v_bfe_u32 v23, v20, 1, 1\nv_lshl_add_u32 v22, v22, 1, v23')
            k(f'v_lshlrev_b32 v22, 1, v22\nv_xor_b32 v21, v21, v22')
            k(f'v_mov_b32 v22, {g.segs[0][1] if g.segs else 0}')
            for th, dl in g.segs[1:]: k(f'v_cmp_le_u32 vcc, {th}, v21\nv_mov_b32 v23, {dl}\ns_nop 0\nv_cndmask_b32 v22, v22, v23, vcc')
            k(f'''v_lshl_add_u32 v21, v21, 4, v22
            s_mov_b32 s6, {g.ldw}
            v_mad_u32_u24 v{d}, v20, s6, v21''')
    def loader(g, pa, offa, pw, offw, szw, dep=None, depA=True, pre=None, st=None, tail=None, dep0=None, pf=(), pub=None):
        k = g.k; NS = g.NS; BN = g.BN
        k(f's_mul_i32 s6, s4, {128*g.lda}')
        k.srd(8, pa, offa, 128*g.lda, 6)
        if g.wmode == 'tr':
            k(f's_mul_i32 s6, s5, {g.tncol}'); k.srd(12, pw, offw, szw, 6); k(f's_sub_u32 s14, s14, s6')
        else:
            k(f's_mul_i32 s6, s5, {g.nk*BN*128}'); k.srd(12, pw, offw, g.nk*BN*128, 6)
        k(f'''v_lshrrev_b32 v3, 3, v0
        s_lshl_b32 s6, s29, 3
        v_add_u32 v3, s6, v3
        v_lshrrev_b32 v4, 1, v3
        v_xor_b32 v4, v4, v0
        v_and_b32 v4, 7, v4
        v_lshlrev_b32 v4, 4, v4
        s_mov_b32 s6, {g.lda}
        v_mad_u32_u24 v4, v3, s6, v4''')
        if g.afrag: k('s_lshl_b32 s6, s29, 10\nv_lshl_add_u32 v4, v0, 4, s6')
        for i in range(1, 4): k(f'v_add_u32 v{4+i}, {4096*i if g.afrag else 32*g.lda*i}, v4')
        npw = BN//8; nw = (npw+3)//4; g.woffs()
        wstep = 64*g.ldw if g.wmode == 'tr' else BN*128
        k(f's_lshl_b32 s32, s29, 10\ns_mov_b32 s33, 0\ns_mov_b32 s34, 0\ns_add_u32 s35, s32, {g.XL}')
        sa, sw = (' sc1' if dep and depA else ''), (' sc1' if dep0 or (dep and not depA) else '')
        if dep0: dep0()
        def isA(o):
            for i in range(4): k(f's_add_u32 m0, s32, {o+4096*i}\ns_nop 0\nbuffer_load_dwordx4 v{4+i}, s[8:11], s33 offen{sa} lds')
            k(f's_add_u32 s33, s33, {16384 if g.afrag else 128}')
        def isW(o, n):
            for i in range(n): k(f's_add_u32 m0, s32, {o+16384+4096*i}\ns_nop 0\nbuffer_load_dwordx4 v{8+i}, s[12:15], s34 offen{sw} lds')
            k(f's_add_u32 s34, s34, {wstep}')
        def issue(n):
            isA(0); isW(0, n)
            k(f's_add_u32 s32, s32, {g.STG}\ns_cmp_ge_u32 s32, s35\ns_cselect_b32 s6, {g.XL}, 0\ns_sub_u32 s32, s32, s6')
        variants = [(nw, 'a')]
        if npw % 4:
            k(f's_cmp_ge_u32 s29, {npw % 4}\ns_cbranch_scc1 {g.lab("ldb")}')
            variants.append((nw-1, 'b'))
        for n, t in variants:
            P = 4+n; nd = P
            k(f'{g.lab("ld"+t)}:')
            if dep:
                nd = 4 if depA else n
                for s in range(NS-1): isW(s*g.STG, n) if depA else isA(s*g.STG)
                dep()
                if st: k.stamp(st)
                if pre: pre(0)
                for s in range(NS-1): isA(s*g.STG) if depA else isW(s*g.STG, n)
            else:
                for s in range(NS-1): isA(s*g.STG); isW(s*g.STG, n)
            k(f's_add_u32 s32, s32, {g.STG*(NS-1)}')
            if pre: k(f's_waitcnt vmcnt({nd*(NS-1)})'); pre(1)
            for s in range(NS-2): k(f's_waitcnt vmcnt({nd*(NS-2-s)+P*s})\ns_barrier'); issue(n)
            k(f's_mov_b32 s36, {g.nk-2*NS+3}\n{g.lab("lp"+t)}:')
            k(f's_waitcnt vmcnt({P*(NS-2)})\ns_barrier'); issue(n)
            k(f's_sub_u32 s36, s36, 1\ns_cmp_lg_u32 s36, 0\ns_cbranch_scc1 {g.lab("lp"+t)}')
            xo = 0 if tail else sum(k.prefetch(*x) for x in pf)
            if pub: k.publish(*pub)
            for s in range(NS-2, -1, -1):
                k(f's_waitcnt vmcnt({P*s + xo})\ns_barrier')
                if tail and s == OPT.get('tl', 1): xo = tail() + sum(k.prefetch(*x) for x in pf)
            if t == 'a' and len(variants) > 1: k(f's_branch {g.lab("ldx")}')
        k(f'{g.lab("ldx")}:\ns_barrier')
    def csetup(g):
        k = g.k; S = g.BN*2
        k(f's_and_b32 s31, s3, {g.WC-1}\ns_lshr_b32 s30, s3, {g.WC.bit_length()-1}')
        k(f'''v_lshrrev_b32 v3, 1, v1
        v_xor_b32 v3, v3, v2
        v_lshlrev_b32 v3, 4, v3
        v_lshl_add_u32 v3, v1, 7, v3
        s_mul_i32 s6, s30, {g.MT*2048}
        v_add_u32 v4, s6, v3
        v_xor_b32 v5, 64, v4''')
        if g.afrag: k(f's_mul_i32 s6, s30, {g.MT*1024}\nv_lshl_add_u32 v4, v0, 4, s6\nv_add_u32 v5, 8192, v4')
        if g.wmode == 'frag':
            g.NB = 1
            k(f'v_lshlrev_b32 v6, 4, v0\ns_mul_i32 s6, s31, {g.NT*1024}\ns_add_u32 s6, s6, 16384\nv_add_u32 v6, s6, v6')
        else:
            g.NB = min(g.NT, 2 if g.BN == 224 else 4)
            k(f'''v_lshrrev_b32 v10, 2, v1
            v_lshl_add_u32 v11, v2, 3, v10
            v_mul_u32_u24 v11, {S}, v11
            v_and_b32 v12, 3, v0
            v_lshl_add_u32 v11, v12, 3, v11
            v_add_u32 v11, 16384, v11
            v_and_b32 v12, 1, v2''')
            if g.BN != 224: k('v_lshrrev_b32 v10, 1, v10\nv_lshl_add_u32 v12, v12, 1, v10')
            for j in range(g.NB):
                k(f's_mul_i32 s6, s31, {g.NT}\ns_add_u32 s6, s6, {j}\nv_xor_b32 v10, s6, v12\nv_lshl_add_u32 v{6+j}, v10, 5, v11')
        for i in range(g.MT*g.NT*4): k(f'v_mov_b32 v{g.ACC+i}, 0')
        k('s_mov_b32 s32, 0')
    def reads(g, kk, F):
        r = []; S = g.BN*2
        ra = [f'ds_read_b128 {vr(F+4*mt,4)}, v{4+kk} offset:{mt*(1024 if g.afrag else 2048)}' for mt in range(g.MT)]
        for nt in range(g.NT):
            d = F + 4*(g.MT+nt)
            if g.wmode == 'frag': r.append(f'ds_read_b128 {vr(d,4)}, v6 offset:{(kk*(g.BN//16)+nt)*1024}')
            else:
                for h in range(2):
                    r.append(f'ds_read_b64_tr_b16 {vr(d+2*h,2)}, v{6+nt % g.NB} offset:{(32*kk+4*h)*S + (nt//g.NB)*g.NB*32}')
        return ra + r
    def mfmas(g, F, T):
        r = []
        for nt in range(g.NT):
            for mt in range(g.MT):
                a, w, c = vr(F+4*mt, 4), vr(F+4*(g.MT+nt), 4), vr(g.acc(mt, nt), 4)
                r.append(f'v_mfma_f32_16x16x32_bf16 {c}, {a}, {w}, {c}' if nt in T else f'v_mfma_f32_16x16x32_bf16 {c}, {w}, {a}, {c}')
        return r
    def mix(g, ms, rs, extra=()):
        k = g.k; rs = list(rs); extra = list(extra)
        per = -(-len(rs) // max(1, len(ms)-min(6, len(ms)//2)))
        for m in ms:
            k(m)
            if rs:
                for _ in range(per):
                    if rs: k(rs.pop(0))
            else:
                for _ in range(2):
                    if extra: k(extra.pop(0))
        for x in rs + extra: k(x)
    def mainloop(g, st, T=(), tag='', extra=(), vm=''):
        k = g.k
        adv = [f's_add_u32 s32, s32, 1', f's_cmp_eq_u32 s32, {g.NS}', f's_mov_b32 s6, {g.STG}', f's_cselect_b32 s6, {-(g.NS-1)*g.STG}, s6',
               f's_cselect_b32 s32, 0, s32'] + [f'v_add_u32 v{i}, s6, v{i}' for i in range(4, 6+g.NB)]
        k.stamp(st); k('s_barrier'); k.stamp(st+1)
        for r in g.reads(0, g.FX): k(r)
        k(f's_mov_b32 s36, {g.nk}\ns_branch {g.lab("mid"+tag)}\n.p2align 4\n{g.lab("loop"+tag)}:\ns_barrier')
        g.mix(g.mfmas(g.FY, T), g.reads(0, g.FX), extra)
        k(f'{g.lab("mid"+tag)}:\ns_waitcnt lgkmcnt(0)')
        g.mix(g.mfmas(g.FX, T), g.reads(1, g.FY), adv + ['s_sub_u32 s36, s36, 1', 's_cmp_lg_u32 s36, 0'])
        k(f's_waitcnt {vm}lgkmcnt(0)\ns_cbranch_scc1 {g.lab("loop"+tag)}\ns_barrier')
        for m in g.mfmas(g.FY, T): k(m)
        k('s_nop 7'); k.stamp(st+2)
    def pack_pair(g, c0, c1, d):
        g.k(f'''v_cvt_pk_bf16_f32 v{d}, v{c0}, v{c0+1}
        v_cvt_pk_bf16_f32 v{d+1}, v{c0+2}, v{c0+3}
        v_cvt_pk_bf16_f32 v{d+2}, v{c1}, v{c1+1}
        v_cvt_pk_bf16_f32 v{d+3}, v{c1+2}, v{c1+3}
        s_nop 1
        v_permlane16_swap_b32 v{d}, v{d+2}
        v_permlane16_swap_b32 v{d+1}, v{d+3}''')
    def pg16(g, d):
        g.k(f'v_and_b32 v{d}, 1, v2\nv_lshlrev_b32 v{d}, 5, v{d}\nv_lshrrev_b32 v3, 1, v2\nv_lshl_add_u32 v{d}, v3, 4, v{d}')
    def pkaddr(g, d):
        g.pg16(d); g.k(f'v_lshlrev_b32 v{d}, 4, v{d}\nv_lshl_add_u32 v{d}, v1, 4, v{d}')
```

```python
from core import *
from util import *
from k012 import unpack
ZS, TB, QS, SY, WSG = 122880, 151552, 98304, 155648, 122880
WO = [16, 17, 18, 19, 24, 25, 26]

def PF(c): return [x for x, w in zip(((S_WSP, 0, 4*MB), (S_WSP, 4*MB, 4*MB), (S_WOUT, 0, 1792*2048)), OPT.get('pf', 'DCD')) if w == c]

def attn(k):
    S0, OA, LA, QF, KF, ON = 32, 176, 192, 208, 216, 248
    k(f'''s_lshr_b32 s16, s3, 2
    s_and_b32 s17, s3, 3
    s_lshl_b32 s6, s5, 1
    s_add_u32 s18, s6, s16
    s_lshl_b32 s19, s18, 17
    s_lshl_b32 s26, s4, 2
    v_add_u32 v4, 2, v1
    v_subrev_u32 v4, s4, v4
    v_cmp_le_u32 s[56:57], 3, v4
    s_add_u32 s26, s26, s17
    v_and_b32 v1, 31, v0
    v_lshrrev_b32 v2, 5, v0''')
    k.srd(12, S_WS, QKV+32*131072, 131072, 19); k.srd(20, S_WS, QKV+64*131072, 131072, 19); k.srd(40, S_WS, O_, 4*MB)
    k('s_mov_b32 s24, 0xf149f2ca\nv_mov_b32 v6, s24\nv_lshlrev_b32 v7, 2, v2\nv_sub_u32 v7, v1, v7')
    k('s_cmp_lt_u32 s26, 8\ns_cselect_b32 s25, s24, 0\nv_mov_b32 v8, s25')
    for i in range(16):
        kl = 8*(i//4) + i % 4
        k(f'v_cmp_le_i32 vcc, {kl}, v7\ns_nop 1\nv_cndmask_b32 v{S0+128+i}, v6, 0, vcc\nv_cndmask_b32 v{S0+i}, v8, v6, vcc')
    for b in range(1, 8):
        k(f's_add_u32 s27, s26, {b}\ns_cmp_lt_u32 s27, 8\ns_cselect_b32 s27, s24, 0')
        for i in range(16): k(f'v_mov_b32 v{S0+16*b+i}, s27')
    for i in range(32): k(f'v_mov_b32 v{OA+i}, 0')
    for i in range(4): k(f'v_mov_b32 v{ON+i}, 0x3f803f80')
    k(f'''v_lshrrev_b32 v9, 2, v1
    v_and_b32 v9, 3, v9
    v_xor_b32 v9, v9, v2
    v_lshlrev_b32 v9, 4, v9
    v_lshl_add_u32 v9, v1, 6, v9
    s_mul_i32 s27, s16, 24576
    s_lshl_b32 s6, s17, 11
    s_add_u32 s7, s6, s27
    v_add_u32 v9, s7, v9
    v_xor_b32 v10, 32, v9
    v_bfe_u32 v11, v0, 2, 2
    v_lshl_add_u32 v11, v2, 2, v11
    v_lshlrev_b32 v11, 6, v11
    v_bfe_u32 v12, v0, 4, 1
    v_lshl_add_u32 v11, v12, 5, v11
    v_and_b32 v12, 3, v0
    v_lshl_add_u32 v11, v12, 3, v11
    s_add_u32 s7, s7, 49152
    v_add_u32 v11, s7, v11
    v_lshlrev_b32 v12, 6, v1
    v_lshl_add_u32 v12, v2, 4, v12
    s_lshl_b32 s28, s3, 11
    s_add_u32 s28, s28, {QS}
    v_add_u32 v12, s28, v12
    s_lshl_b32 s6, s17, 10
    s_add_u32 s27, s27, s6
    s_lshl_b32 s7, s4, 13
    s_add_u32 s6, s6, s7
    s_sub_u32 s6, s6, 16384
    v_lshlrev_b32 v4, 4, v0
    v_and_b32 v5, 48, v0
    v_xor_b32 v5, v4, v5
    v_add_u32 v4, s6, v4
    v_add_u32 v5, s6, v5''')
    k.sync([(0, 5, 4, 4)], 14, 's[56:57]'); k.stamp(4)
    for i in range(6): k(f's_add_u32 m0, s27, {4096*i}\ns_nop 0\nbuffer_load_dwordx4 v5, s[12:15], 0 offen sc1 lds\nv_add_u32 v5, 4096, v5')
    for i in range(6): k(f's_add_u32 m0, s27, {49152+4096*i}\ns_nop 0\nbuffer_load_dwordx4 v4, s[20:23], 0 offen sc1 lds\nv_add_u32 v4, 4096, v4')
    k('s_waitcnt vmcnt(6)\ns_barrier'); k.stamp(5)
    k(f'ds_read_b128 {vr(QF,4)}, v12\nds_read_b128 {vr(QF+4,4)}, v12 offset:32')
    def kread(b): k(f'ds_read_b128 {vr(KF+8*(b%4),4)}, v9 offset:{2048*b}\nds_read_b128 {vr(KF+8*(b%4)+4,4)}, v10 offset:{2048*b}')
    def vmax(b):
        s = S0+16*b
        if b == 0: k(f'v_max_f32 v13, v{s}, v{s+1}')
        for i in range(1 if b == 0 else 0, 8): k(f'v_max3_f32 v13, v{s+2*i}, v{s+2*i+1}, v13')
    for b in range(3): kread(b)
    for b in range(9):
        if b+3 < 9: kread(b+3)
        k(f's_waitcnt lgkmcnt({2*min(3, 8-b)})')
        for t in range(2): k(f'v_mfma_f32_32x32x16_bf16 {vr(S0+16*b,16)}, {vr(KF+8*(b%4)+4*t,4)}, {vr(QF+4*t,4)}, {vr(S0+16*b,16)}')
        if b == 2: k('s_nop 1')
        if b >= 2: vmax(b-2)
    k('s_waitcnt vmcnt(0)\ns_barrier')
    k.stamp(28); k('s_cmp_lt_u32 s3, 4\ns_cbranch_scc1 L_nst')
    for i in range(7): k(f's_add_u32 m0, s32, {WSG+4096*i}\ns_nop 0\nbuffer_load_dwordx4 v{WO[i]}, s[44:47], s33 offen lds')
    k('L_nst:')
    for x in PF('T'): k.prefetch(*x, 8, 3)
    k.stamp(29)
    def vread(b):
        for t in range(2):
            for j in range(2): k(f'ds_read_b64_tr_b16 {vr(KF+8*(b%4)+4*t+2*j,2)}, v11 offset:{2048*b+1024*t+512*j}')
    vread(0); vread(1); k('s_nop 3'); vmax(7); vmax(8)
    k(f'''v_mov_b32 v14, v13
    s_mov_b32 s24, 0x3e8293ee
    s_mov_b32 s25, s24
    v_permlane32_swap_b32 v14, v13
    v_max_f32 v13, v13, v14
    v_mul_f32_e64 v14, s24, -v13
    v_mov_b32 v15, v14''')
    for b in range(9):
        s = S0+16*b
        if b+2 < 9: vread(b+2)
        for i in range(8): k(f'v_pk_fma_f32 {vr(s+2*i,2)}, {vr(s+2*i,2)}, s[24:25], v[14:15]')
        for i in range(16): k(f'v_exp_f32 v{s+i}, v{s+i}')
        for i in range(8): k(f'v_cvt_pk_bf16_f32 v{s+i}, v{s+2*i}, v{s+2*i+1}')
        k(f's_waitcnt lgkmcnt({4*min(2, 8-b)})\ns_nop 0')
        for t in range(2):
            k(f'v_mfma_f32_32x32x16_bf16 {vr(OA,16)}, {vr(KF+8*(b%4)+4*t,4)}, {vr(s+4*t,4)}, {vr(OA,16)}')
            k(f'v_mfma_f32_32x32x16_bf16 {vr(LA,16)}, {vr(ON,4)}, {vr(s+4*t,4)}, {vr(LA,16)}')
    k(f'''v_lshrrev_b32 v4, 4, v1
    v_lshl_add_u32 v4, v4, 2, v2
    v_and_b32 v1, 15, v0
    v_lshl_add_u32 v4, v4, 4, v1
    v_lshlrev_b32 v4, 4, v4
    s_lshl_b32 s6, s4, 18
    s_lshl_b32 s7, s18, 13
    s_add_u32 s6, s6, s7
    s_lshl_b32 s7, s17, 11
    s_add_u32 s6, s6, s7
    v_lshrrev_b32 v2, 4, v0
    s_nop 7
    v_rcp_f32 v13, v{LA}
    s_nop 0''')
    for i in range(16): k(f'v_mul_f32 v{OA+i}, v{OA+i}, v13')
    for i in range(8): k(f'v_cvt_pk_bf16_f32 v{16+i}, v{OA+2*i}, v{OA+2*i+1}')
    k(f'''s_nop 1
    v_permlane32_swap_b32 v16, v18
    v_permlane32_swap_b32 v17, v19
    v_permlane32_swap_b32 v20, v22
    v_permlane32_swap_b32 v21, v23
    buffer_store_dwordx4 v[16:19], v4, s[40:43], s6 offen sc1
    buffer_store_dwordx4 v[20:23], v4, s[40:43], s6 offen offset:512 sc1''')
    k.stamp(6); k('s_waitcnt vmcnt(2)\ns_barrier'); k.arrive(1)

def repack(k):
    k.srd(8, S_WS, WP, 7*MB); k.srd(12, S_WS, CS2, 16*16*896)
    k(f'''v_lshrrev_b32 v5, 2, v1
    v_lshl_add_u32 v5, v2, 3, v5
    v_mul_u32_u24 v5, 448, v5
    v_and_b32 v6, 3, v0
    v_lshl_add_u32 v5, v6, 3, v5
    v_and_b32 v6, 1, v2
    v_xor_b32 v6, s3, v6
    v_lshl_add_u32 v5, v6, 5, v5
    v_add_u32 v5, {WSG}, v5''')
    for j in range(4):
        for kk in range(2):
            for h in range(2): k(f'ds_read_b64_tr_b16 {vr(128+8*j+4*kk+2*h,2)}, v5 offset:{(32*kk+4*h)*448+128*j}')
    k(f'''s_lshl_b32 s6, s5, 4
    s_add_u32 s6, s6, s4
    s_mul_i32 s6, s6, 28672
    s_lshl_b32 s7, s3, 10
    s_add_u32 s26, s6, s7
    s_lshl_b32 s7, s4, 4
    s_add_u32 s7, s7, s5
    s_mul_i32 s7, s7, 896
    s_lshl_b32 s27, s3, 6
    s_add_u32 s27, s7, s27
    v_lshlrev_b32 v176, 4, v0
    v_add_u32 v177, 14336, v176
    v_lshlrev_b32 v178, 2, v1
    s_waitcnt lgkmcnt(0)''')
    for j in range(4):
        for kk in range(2): k(f'v_mfma_f32_16x16x32_bf16 {vr(160+4*j,4)}, v[248:251], {vr(128+8*j+4*kk,4)}, {vr(160+4*j,4) if kk else 0}')
    k = K('tmp', 0, 0, 0, 0); k('s_nop 4')
    if OPT.get('rp', 'go') == 'go': k.spin(12, 1, 179)
    for j in range(4):
        if j == 3: k('s_cmp_ge_u32 s3, 2\ns_cbranch_scc1 L_rp')
        k(f'''buffer_store_dwordx4 {vr(128+8*j,4)}, v176, s[8:11], s26 offen sc1
        buffer_store_dwordx4 {vr(132+8*j,4)}, v177, s[8:11], s26 offen sc1
        s_add_u32 s26, s26, 4096
        s_mov_b64 exec, 0xffff
        buffer_store_dword v{160+4*j}, v178, s[12:15], s27 offen offset:{256*j} sc1
        s_mov_b64 exec, -1''')
    k('L_rp:')
    return '\n'.join(k.L)

def res_compute(g, st, res_ptr, res_off, out_ptr, out_off, stats):
    k = g.k; R = g.FREE; sc = ' sc1' if stats else ''
    k.srd(16, res_ptr, res_off, 4*MB); k.srd(40, out_ptr, out_off, 4*MB); k.srd(44, S_WS, ST, 32768)
    g.pg16(13)
    k(f'''v_lshl_add_u32 v13, v1, 11, v13
    v_add_u32 v14, 32768, v13
    s_lshl_b32 s38, s4, 18
    s_lshl_b32 s6, s3, 16
    s_add_u32 s38, s38, s6
    s_lshl_b32 s6, s5, 7
    s_add_u32 s38, s38, s6
    s_lshl_b32 s50, s4, 18
    s_lshl_b32 s6, s5, 14
    s_add_u32 s50, s50, s6
    s_lshl_b32 s6, s3, 11
    s_add_u32 s50, s50, s6
    s_add_u32 s51, s50, 8192''')
    g.pkaddr(15)
    rm = lambda mt, p, sr: f'v{13+mt}, s[{sr}:{sr+3}], s38 offen offset:{64*p}'
    pk = lambda mt, p, sr: f'v15, s[{sr}:{sr+3}], s{50+p} offen offset:{1024*mt} sc1'
    ld, so = (rm, pk) if stats else (pk, rm)
    for mt in range(2):
        for p in range(2): k(f'buffer_load_dwordx4 {vr(R+8*mt+4*p,4)}, {ld(mt, p, 16)}')
    g.csetup()
    if stats: k(stats)
    g.mainloop(st, extra=[f's_cmp_lg_u32 s36, {g.nk-7}\ns_cbranch_scc1 L_nc\ns_waitcnt vmcnt(0)\nL_nc:'] if stats else [])
    k('s_waitcnt vmcnt(0)')
    T = g.FX
    for mt in range(2):
        for p in range(2):
            r = R+8*mt+4*p; c = g.acc(mt, 2*p); d = g.FY + 8*mt + 4*p
            k(f'v_permlane16_swap_b32 v{r}, v{r+2}\nv_permlane16_swap_b32 v{r+1}, v{r+3}')
            unpack(k, r, 4, T)
            for i in range(4): k(f'v_pk_add_f32 {vr(c+2*i,2)}, {vr(c+2*i,2)}, {vr(T+2*i,2)}')
            g.pack_pair(c, c+4, d)
            k(f'buffer_store_dwordx4 {vr(d,4)}, {so(mt, p, 40)}')
    if not stats: return
    for mt in range(2):
        unpack(k, g.FY + 8*mt, 8, T)
        k(f'v_pk_mul_f32 {vr(T+16,2)}, {vr(T,2)}, {vr(T,2)}')
        for i in range(1, 8): k(f'v_pk_fma_f32 {vr(T+16,2)}, {vr(T+2*i,2)}, {vr(T+2*i,2)}, {vr(T+16,2)}\nv_pk_add_f32 {vr(T,2)}, {vr(T,2)}, {vr(T+2*i,2)}')
        k(f'v_add_f32 v{4+mt}, v{T}, v{T+1}\nv_add_f32 v{6+mt}, v{T+16}, v{T+17}')
    k(f'''v_lshrrev_b32 v8, 5, v0
    v_lshl_add_u32 v8, v8, 4, v1
    v_permlane32_swap_b32 v4, v5
    v_permlane32_swap_b32 v6, v7
    v_add_f32 v4, v4, v5
    v_add_f32 v6, v6, v7
    v_and_b32 v9, 1, v2
    v_lshlrev_b32 v9, 2, v9
    v_permlane16_swap_b32 v4, v6
    v_lshl_add_u32 v8, v8, 3, v9
    v_add_f32 v4, v4, v6
    s_lshl_b32 s6, s4, 10
    s_lshl_b32 s7, s3, 8
    s_add_u32 s6, s6, s7
    buffer_atomic_add_f32 v4, v8, s[44:47], s6 offen''')
    k.stamp(27); k.arrive(2)

def win_compute(g, wc):
    k = g.k; nz = 4 - wc; Z = list(range(nz)); Y = list(range(nz, 7))
    g.mainloop(10, Z, 'ab'[wc])
    F = g.FX; R4 = F; N4 = F+16; CT = F+32; T = F+40; PQ = F+44; RR = F+76; CC = F+84
    k(f'''s_lshl_b32 s6, s30, 8
    s_add_u32 s6, s6, {TB}
    v_lshl_add_u32 v4, v2, 4, s6
    v_lshl_add_u32 v14, v1, 2, s6
    s_mov_b32 s6, {TB+1024+448*wc}
    v_lshl_add_u32 v5, v1, 2, s6
    v_lshl_add_u32 v15, v2, 4, s6
    v_mov_b32 v10, 0xc0135761
    v_mov_b32 v11, v10''')
    def rd_rn(o):
        for mt in range(4): k(f'ds_read_b128 {vr(R4+4*mt,4)}, v4 offset:{64*mt}\nds_read_b128 {vr(N4+4*mt,4)}, v4 offset:{o+64*mt}')
    rd_rn(512)
    for nt in Z: k(f'ds_read_b32 v{CT+2*nt}, v5 offset:{64*nt}')
    k('s_waitcnt lgkmcnt(0)')
    for mt in range(4): k(f'ds_read_b32 v{RR+2*mt}, v14 offset:{64*mt}\nds_read_b32 v{RR+2*mt+1}, v14 offset:{512+64*mt}')
    for nt in Y: k(f'ds_read_b128 {vr(CC+4*(nt-nz),4)}, v15 offset:{64*nt}')
    for mt in range(4):
        P, Q = PQ + 8*mt, PQ + 8*mt + 4
        for nt in Z:
            c = g.acc(mt, nt)
            for i in (0, 2): k(f'v_pk_mul_f32 {vr(c+i,2)}, {vr(c+i,2)}, {vr(R4+4*mt+i,2)}')
            for i in (0, 2): k(f'v_pk_fma_f32 {vr(c+i,2)}, {vr(N4+4*mt+i,2)}, {vr(CT+2*nt,2)}, {vr(c+i,2)} op_sel_hi:[1,0,1]')
            gelu4(k, c, T)
            for i in (0, 2):
                if nt == 0: k(f'v_mov_b32 v{P+i}, v{c+i}\nv_mov_b32 v{P+i+1}, v{c+i+1}\nv_pk_mul_f32 {vr(Q+i,2)}, {vr(c+i,2)}, {vr(c+i,2)}')
                else: k(f'v_pk_add_f32 {vr(P+i,2)}, {vr(P+i,2)}, {vr(c+i,2)}\nv_pk_fma_f32 {vr(Q+i,2)}, {vr(c+i,2)}, {vr(c+i,2)}, {vr(Q+i,2)}')
    k(f'''v_bfe_u32 v6, v0, 3, 1
    v_lshlrev_b32 v6, 2, v6
    v_add_u32 v6, v6, v2
    v_lshlrev_b32 v6, 1, v6
    v_bfe_u32 v7, v0, 2, 1
    v_add_u32 v6, v6, v7
    v_lshlrev_b32 v6, 2, v6
    v_and_b32 v7, 3, v0
    v_add_lshl_u32 v6, v6, v7, 2
    s_mov_b32 s56, 0xaaaaaaaa
    s_mov_b32 s57, s56
    s_mov_b32 s58, 0xcccccccc
    s_mov_b32 s59, s58
    s_lshl_b32 s38, s4, 10
    s_lshl_b32 s7, s30, 9
    s_add_u32 s38, s38, s7
    s_add_u32 s38, s38, 16384''')
    dpp = lambda d, a, m, bm: k(f'v_add_f32_dpp v{d}, v{a}, v{a} {m} row_mask:0xf bank_mask:{bm}')
    for i in range(2):
        a, b = PQ + 16*i, PQ + 16*i + 8
        for j in range(8): dpp(a+j, a+j, 'row_ror:8', '0x3')
        for j in range(8): dpp(a+j, b+j, 'row_ror:8', '0xc')
        four = [a, a+1, a+4, a+5]
        for j in four: dpp(j, j, 'row_shl:4', '0x5')
        for j in four: dpp(j, j+2, 'row_shr:4', '0xa')
        for j in four: dpp(j, j, 'quad_perm:[2,3,0,1]', '0xf')
        for j in four: dpp(j, j, 'quad_perm:[1,0,3,2]', '0xf')
        k(f'''v_cndmask_b32 v{a}, v{a}, v{a+4}, s[56:57]
        v_cndmask_b32 v{a+1}, v{a+1}, v{a+5}, s[56:57]
        v_cndmask_b32 v{a}, v{a}, v{a+1}, s[58:59]
        buffer_atomic_add_f32 v{a}, v6, s[44:47], s38 offen offset:{256*i}''')
    k(f's_mul_i32 s6, s30, {4*3584}\ns_add_u32 s6, s6, {ZS}\nv_lshl_add_u32 v14, v0, 3, s6\ns_waitcnt lgkmcnt(0)')
    def z1(mt):
        r = vr(RR+2*mt, 2)
        for nt in Y:
            c = g.acc(mt, nt)
            for i in (0, 2): k(f'v_pk_mul_f32 {vr(c+i,2)}, {vr(c+i,2)}, {r} op_sel_hi:[1,0]')
            for i in (0, 2): k(f'v_pk_fma_f32 {vr(c+i,2)}, {vr(CC+4*(nt-nz)+i,2)}, {r}, {vr(c+i,2)} op_sel:[0,1,0]')
            gelu4(k, c, T)
            k(f'v_cvt_pk_bf16_f32 v{c}, v{c}, v{c+1}\nv_cvt_pk_bf16_f32 v{c+1}, v{c+2}, v{c+3}')
            k(f'ds_write_b64 v14, {vr(c,2)} offset:{(mt*7 + nt - nz + 3*wc)*512}')
    k.stamp(13); z1(0); z1(1); k.arrive(3); z1(2)
    k.spin(28, 1, 6); k.stamp(14)
    k(f'''v_lshlrev_b32 v7, 3, v0
    buffer_load_dwordx2 v[8:9], v7, s[44:47], s38 offen sc1
    s_lshl_b32 s7, s3, 9
    s_add_u32 s7, s7, {TB+2048}
    v_lshl_add_u32 v6, v0, 2, s7
    v_lshl_add_u32 v4, v2, 4, s7''')
    g.pkaddr(12)
    k(f'''    s_lshl_b32 s39, s5, 6
    s_lshl_b32 s7, s4, 2
    s_add_u32 s39, s39, s7
    s_lshl_b32 s7, s30, 1
    s_add_u32 s39, s39, s7
    s_mul_i32 s39, s39, 7168
    s_add_u32 s39, s39, {4096*wc}''')
    z1(3)
    k('s_waitcnt vmcnt(0)'); rstats(k, 8, 9, '0x3a124925')
    k('ds_write_b32 v6, v8\nds_write_b32 v6, v9 offset:256\ns_waitcnt lgkmcnt(0)')
    rd_rn(256); k('s_waitcnt lgkmcnt(0)')
    n = 0
    for i in range(2):
        for nt in Z:
            for mt in (2*i, 2*i+1):
                c = g.acc(mt, nt)
                for j in (0, 2): k(f'v_pk_fma_f32 {vr(c+j,2)}, {vr(c+j,2)}, {vr(R4+4*mt+j,2)}, {vr(N4+4*mt+j,2)}')
            d = PQ + 4*n; n += 1
            g.pack_pair(g.acc(2*i, nt), g.acc(2*i+1, nt), d)
            k(f'buffer_store_dwordx4 {vr(d,4)}, v12, s[16:19], s39 offen offset:{nt*1024} sc1')
        k('s_add_u32 s39, s39, 7168')
    k.stamp(15); k.arrive(4)

def win_pre(k):
    def pre(ph):
        if ph == 0:
            k.srd(44, S_WS, ST, 32768); k.srd(40, S_WS, CS2, 16*16*896)
            k(f'''s_lshl_b32 s6, s29, 6
            v_add_u32 v24, s6, v0
            v_and_b32 v25, 127, v24
            v_lshlrev_b32 v23, 3, v25
            s_lshl_b32 s6, s4, 10
            buffer_load_dwordx2 v[26:27], v23, s[44:47], s6 offen sc1
            v_min_u32 v22, 223, v24
            v_lshlrev_b32 v22, 2, v22
            s_mul_i32 s6, s5, 896''')
            for i in range(16): k(f'buffer_load_dword v{28+i}, v22, s[40:43], s6 offen sc1\ns_add_u32 s6, s6, 14336')
        else:
            rstats(k, 26, 27, '0x3a800000')
            for i in range(1, 16): k(f'v_add_f32 v28, v28, v{28+i}')
            k(f'''s_mov_b32 s6, {TB}
            v_lshl_add_u32 v25, v25, 2, s6
            v_lshl_add_u32 v24, v24, 2, s6
            ds_write_b32 v25, v26
            ds_write_b32 v25, v27 offset:512
            ds_write_b32 v24, v28 offset:1024
            s_waitcnt lgkmcnt(0)''')
    return pre

def sp_compute(g):
    k = g.k; ZR = g.FREE; BB = ZR + 28
    k.srd(40, S_WS, U_, 2048*3584); k.srd(44, S_BSP, 0, 4096)
    k(f's_lshl_b32 s38, s4, 3\ns_lshl_b32 s7, s3, 1\ns_add_u32 s38, s38, s7\ns_lshl_b32 s7, s38, 5\nv_lshlrev_b32 v15, 1, v1')
    for mt in range(2): k(f'buffer_load_ushort v{BB+2*mt}, v15, s[44:47], s7 offen offset:{32*mt}')
    g.csetup(); g.mainloop(16)
    k(f's_mul_i32 s6, s3, 7168\ns_add_u32 s6, s6, {ZS}\nv_lshl_add_u32 v6, v0, 3, s6')
    for i in range(14): k(f'ds_read_b64 {vr(ZR+2*i,2)}, v6 offset:{512*i}')
    g.pkaddr(4)
    k(f'''v_and_b32 v5, 1, v2
    v_lshrrev_b32 v3, 1, v2
    v_lshl_add_u32 v5, v5, 2, v3
    v_lshl_add_u32 v5, v5, 4, v1
    v_lshlrev_b32 v5, 4, v5
    s_mul_i32 s6, s4, {128*3584}
    s_lshr_b32 s7, s5, 1
    s_mul_i32 s7, s7, {7*8192}
    s_add_u32 s6, s6, s7
    s_lshl_b32 s7, s3, 11
    s_add_u32 s6, s6, s7
    s_waitcnt vmcnt(0) lgkmcnt(0)
    v_lshlrev_b32 v{BB}, 16, v{BB}
    v_lshlrev_b32 v{BB+2}, 16, v{BB+2}
    s_bitcmp1_b32 s5, 0
    s_cbranch_scc1 {g.lab('odd')}''')
    T = g.FX
    def prep(mt, nt):
        c = g.acc(mt, nt)
        unpack(k, ZR+14*mt+2*nt, 2, T)
        for i in (0, 2): k(f'v_pk_add_f32 {vr(c+i,2)}, {vr(c+i,2)}, {vr(BB+2*mt,2)} op_sel_hi:[1,0]')
        for i in (0, 2): k(f'v_pk_mul_f32 {vr(c+i,2)}, {vr(c+i,2)}, {vr(T+i,2)}')
        return c
    for odd in range(2):
        d = T + 4
        for i in range(3):
            k(f's_add_u32 s7, s6, {(4*odd+i)*8192}')
            for mt in range(2):
                g.pack_pair(prep(mt, 2*i+odd), prep(mt, 2*i+odd+1), d)
                k(f'buffer_store_dwordx4 {vr(d,4)}, v4, s[40:43], s7 offen offset:{1024*mt} sc1'); d += 4
        g.pack_pair(prep(0, 6-6*odd), prep(1, 6-6*odd), d)
        k(f's_add_u32 s7, s6, {3*8192}\nbuffer_store_dwordx4 {vr(d,4)}, v5, s[40:43], s7 offen offset:{512*odd} sc1')
        k(f's_branch {g.lab("ex")}\n{g.lab("odd")}:' if odd == 0 else f'{g.lab("ex")}:')
    k.stamp(26); k.arrive(5)

def k_mega():
    k = K('sequential_preLN__sliding_block__mixer_gmlp__prompt', 256, 512, 163840, 256); o = OPT
    Q = Gemm(k, 'q', 192, 1024, 2048, 6144, 2, 2, o.get('qNS', 4), 'tr', 128, ((0, 0), (4, 1984), (8, 3968), (12, -128), (16, 1856), (20, 3840)))
    C = Gemm(k, 'c', 64, 1024, 2048, 2048, 4, 1, 6, 'tr', afrag=True)
    D = Gemm(k, 'd', 224, 1024, 2048, 0, 2, 2, 3, 'frag', afrag=True)
    DT = Gemm(k, 'dt', 224, 1024, 2048, 7168, 2, 2, 3, 'tr', 224, ((0, 3584), (8, -128), (14, 3488), (20, -224)), True)
    E = Gemm(k, 'e', 112, 2048, 4096, 0, 4, 1, 4, 'frag')
    F = Gemm(k, 'f', 64, 1792, 3584, 2048, 4, 1, 6, 'tr', afrag=True)
    xr = o.get('xr', 4); lx = xr.bit_length()-1; nxc = 16//(32//xr); lc = nxc.bit_length()-1
    k(f'''s_cmp_ge_u32 s2, 256
    s_cbranch_scc1 {k.lab('end')}
    s_load_dwordx16 s[64:79], s[0:1], 0
    s_load_dwordx4 s[80:83], s[0:1], 64
    s_load_dwordx2 s[84:85], s[0:1], 80
    v_lshrrev_b32 v1, 6, v0
    v_and_b32 v0, 63, v0
    v_readfirstlane_b32 s3, v1
    s_and_b32 s6, s2, 7
    s_lshr_b32 s7, s2, 3
    s_lshr_b32 s4, s6, {lc}
    s_lshl_b32 s4, s4, {lx}
    s_and_b32 s28, s7, {xr-1}
    s_add_u32 s4, s4, s28
    s_and_b32 s5, s6, {nxc-1}
    s_mul_i32 s5, s5, {32//xr}
    s_lshr_b32 s28, s7, {lx}
    s_add_u32 s5, s5, s28
    v_and_b32 v1, 15, v0
    v_lshrrev_b32 v2, 4, v0
    s_mov_b32 s37, 1000000
    v_mov_b32 v254, {SY}
    s_sub_u32 s29, s3, 4
    s_waitcnt lgkmcnt(0)''')
    k.srd(60, S_WS, FL, 65536)
    k(f's_cmp_lt_u32 s3, 4\ns_cbranch_scc1 {k.lab("cq")}')
    k.stamp(0)
    def qtail():
        lb = k.uid('dbg')
        k.srd(44, S_WS, LS, 16384); k.srd(40, S_WS, CS, 16*16*768)
        k(f'''s_lshl_b32 s7, s4, 7
        s_add_u32 s7, s7, s5
        s_lshl_b32 s7, s7, 2
        s_add_u32 s7, s7, {7*8192}
        {lb}:
        buffer_load_dword v16, off, s[60:63], s7 sc1
        s_sub_u32 s37, s37, 1
        s_cselect_b32 s37, 0, s37
        s_cbranch_scc1 {lb}x
        s_waitcnt vmcnt(0)
        v_readfirstlane_b32 s6, v16
        s_cmp_lg_u32 s6, 1
        s_cbranch_scc1 {lb}
        {lb}x:
        s_lshl_b32 s6, s29, 6
        v_add_u32 v24, s6, v0
        v_and_b32 v25, 127, v24
        v_lshlrev_b32 v23, 3, v25
        s_lshl_b32 s6, s4, 10
        buffer_load_dwordx2 v[26:27], v23, s[44:47], s6 offen sc1
        v_min_u32 v22, 191, v24
        v_lshlrev_b32 v22, 2, v22
        s_mul_i32 s6, s5, 768''')
        for i in range(16): k(f'buffer_load_dword v{28+i}, v22, s[40:43], s6 offen sc1\ns_add_u32 s6, s6, {16*768}')
        return 17
    Q.loader(S_X, 0, S_WQKV, 0, 1024*6144, tail=qtail, pf=((S_WO, 0, 2*MB),))
    k('v_lshl_add_u32 v3, v1, 2, v254\nv_mov_b32 v4, 0\nds_write_b32 v3, v4\ns_waitcnt vmcnt(1)')
    for i in range(1, 16): k(f'v_add_f32 v28, v28, v{28+i}')
    k(f'''s_mov_b32 s6, {TB}
    v_lshl_add_u32 v25, v25, 2, s6
    v_lshl_add_u32 v24, v24, 2, s6
    ds_write_b32 v25, v26
    ds_write_b32 v25, v27 offset:512
    ds_write_b32 v24, v28 offset:1024
    s_mul_i32 s33, s4, {64*7168}
    s_lshl_b32 s32, s29, 10
    s_lshl_b32 s6, s2, 2
    s_add_u32 s6, s6, s29
    s_lshl_b32 s6, s6, 11
    v_lshlrev_b32 v4, 5, v0
    s_waitcnt lgkmcnt(0)
    s_barrier''')
    DT.woffs(WO); k(f's_mul_i32 s6, s5, 224'); k.srd(44, S_WIN, 0, 1024*7168, 6); k('s_sub_u32 s46, s46, s6')
    k(f's_branch {k.lab("attn")}\n{k.lab("cq")}:')
    k.stamp(0)
    F0 = Q.FX; W0, X0, A8 = 192, 224, 240
    Q.csetup()
    k.srd(8, S_WQKV, 0, 1024*6144); k.srd(12, S_WS, CS, 16*16*768); k.srd(20, S_X, 0, 4*MB); k.srd(24, S_WS, ST, 114688)
    k(f'''s_lshl_b32 s28, s4, 4
    s_add_u32 s28, s28, s5
    s_lshl_b32 s6, s28, 2
    s_add_u32 s41, s6, s3
    s_lshl_b32 s6, s41, 12
    v_lshlrev_b32 v10, 4, v0''')
    for i in range(4): k(f'buffer_load_dwordx4 {vr(X0+4*i,4)}, v10, s[20:23], s6 offen offset:{1024*i}')
    k(f'''s_lshl_b32 s41, s41, 4
    s_add_u32 s41, s41, {LS-ST}
    s_mul_i32 s40, s28, 768
    s_lshl_b32 s7, s3, 8
    s_add_u32 s40, s40, s7
    s_cmp_eq_u32 s3, 3
    s_cbranch_scc1 L_xs
    v_lshrrev_b32 v10, 3, v0
    v_and_b32 v11, 7, v0
    v_lshlrev_b32 v11, 4, v11
    s_mov_b32 s6, 6144
    v_mad_u32_u24 v10, v10, s6, v11
    s_mul_i32 s6, s4, {64*6144}
    s_lshl_b32 s7, s3, 11
    s_add_u32 s6, s6, s7
    s_lshl_b32 s7, s5, 7
    s_add_u32 s6, s6, s7''')
    for i in range(8): k(f'buffer_load_dwordx4 {vr(W0+4*i,4)}, v10, s[8:11], s6 offen\ns_add_u32 s6, s6, {8*6144}')
    k(f'''s_branch L_qm
    L_xs:
    s_lshl_b32 s28, s28, 6
    v_lshlrev_b32 v10, 14, v2
    v_lshl_add_u32 v10, v1, 2, v10
    v_lshlrev_b32 v11, 13, v0
    s_lshl_b32 s6, s4, 9
    s_lshl_b32 s7, s5, 2
    s_add_u32 s6, s6, s7
    s_mov_b32 exec_hi, 0
    buffer_store_dword v16, v10, s[24:27], s28 offen sc1
    s_mov_b64 exec, 0xff
    buffer_store_dword v16, v11, s[60:63], s6 offen sc1
    s_mov_b64 exec, -1
    L_qm:
    v_mov_b32 v15, 1
    s_cmp_eq_u32 s3, 0
    s_cselect_b32 s39, {Q.nk-o.get('pi', 0)-3}, -1''')
    p = K('tmp', 0, 0, 0, 0)
    p(f's_mov_b32 s6, 0x3f803f80\ns_waitcnt vmcnt(0)')
    for j in range(16):
        for q in range(2):
            a = A8 + 2*(j//8) + q; x = f'v{X0+j}'
            p(f'v_dot2_f32_bf16 v{a}, {x}, {x if q else "s6"}, {f"v{a}" if j % 8 else 0}')
    p('s_nop 2')
    def allsum(n, T, rors):
        for r in rors:
            for j in range(n): p(f'v_add_f32_dpp v{A8+j}, v{A8+j}, v{A8+j} row_ror:{r} row_mask:0xf bank_mask:0xf')
        for q in (16, 32):
            for j in range(n): p(f'v_mov_b32 v{T+j}, v{A8+j}')
            for j in range(n): p(f'v_permlane{q}_swap_b32 v{T+j}, v{A8+j}')
            for j in range(n): p(f'v_add_f32 v{A8+j}, v{A8+j}, v{T+j}')
    allsum(4, A8+4, (8, 4, 2, 1))
    rstats(p, A8, A8+1, '0x3a800000'); rstats(p, A8+2, A8+3, '0x3a800000')
    p(f's_mov_b64 exec, 1\nbuffer_store_dwordx4 {vr(A8,4)}, off, s[24:27], s41 sc1\ns_mov_b64 exec, -1\ns_cmp_eq_u32 s3, 3\ns_cbranch_scc1 L_np')
    for i in range(8):
        unpack(p, W0+4*i, 4, X0 if i else A8)
        if i:
            for j in range(4): p(f'v_pk_add_f32 {vr(A8+2*j,2)}, {vr(A8+2*j,2)}, {vr(X0+2*j,2)}')
    allsum(8, X0, (8,))
    p(f'''v_lshlrev_b32 v10, 5, v0
    s_mov_b64 exec, 0xff
    buffer_store_dwordx4 {vr(A8,4)}, v10, s[12:15], s40 offen sc1
    buffer_store_dwordx4 {vr(A8+4,4)}, v10, s[12:15], s40 offen offset:16 sc1
    s_mov_b64 exec, -1
    L_np:''')
    k.srd(52, 82, 0, 256); k.srd(16, S_WS, QKV, 12*MB); k.srd(44, S_WIN, 0, 64); k('s_mov_b32 s33, 0')
    k(f'v_lshlrev_b32 v13, 9, v2\nv_lshl_add_u32 v13, v1, 2, v13\nv_mov_b32 v14, 1\ns_sub_u32 s38, s39, 2\ns_mov_b32 s50, {7*8192}\ns_mov_b32 s51, {7*8192+4096}')
    k('\n'.join(p.L))
    Q.mainloop(1, extra=[f's_cmp_lg_u32 s36, {Q.nk-o.get("pi", 0)-2}\ns_cbranch_scc1 L_nw\ns_waitcnt vmcnt(0)\nL_nw:',
        's_cmp_lg_u32 s36, s39\ns_cbranch_scc1 L_na\ns_mov_b64 exec, 1\nbuffer_atomic_add v15, off, s[52:55], 0 sc0\ns_mov_b64 exec, -1\nL_na:',
        's_cmp_lg_u32 s36, s38\ns_cbranch_scc1 L_nb\ns_waitcnt vmcnt(0)\nv_readfirstlane_b32 s6, v15\ns_cmp_lg_u32 s6, 255\ns_cbranch_scc1 L_nb\n'
        + ''.join(f'buffer_store_dword v14, v13, s[60:63], s{50+i//2} offen offset:{2048*(i%2)} sc1\n' for i in range(4)) + 'L_nb:'])
    RR, CC = F0+48, F0+56
    k(f'''s_barrier
    s_lshl_b32 s6, s30, 8
    s_add_u32 s6, s6, {TB}
    v_lshl_add_u32 v6, v1, 2, s6
    s_lshl_b32 s6, s31, 7
    s_add_u32 s6, s6, {TB+1024}
    v_lshl_add_u32 v7, v2, 4, s6''')
    for mt in range(4): k(f'ds_read_b32 v{RR+2*mt}, v6 offset:{64*mt}\nds_read_b32 v{RR+2*mt+1}, v6 offset:{512+64*mt}')
    for nt in range(6): k(f'ds_read_b128 {vr(CC+4*nt,4)}, v7 offset:{256*(nt//2)+64*(nt%2)}')
    k.stamp(23); Q.pg16(4)
    k(f'''v_lshl_add_u32 v4, v1, 6, v4
    s_lshl_b32 s6, s5, 1
    s_add_u32 s6, s6, s31
    s_lshl_b32 s6, s6, 17
    s_lshl_b32 s7, s4, 13
    s_add_u32 s6, s6, s7
    s_lshl_b32 s7, s30, 12
    s_add_u32 s6, s6, s7
    s_lshl_b32 s28, s31, 13
    s_add_u32 s7, s7, s28
    s_add_u32 s7, s7, {QS}
    v_add_u32 v5, s7, v4
    s_waitcnt lgkmcnt(0)''')
    n = 0
    for p in (1, 2, 0):
        k(f's_add_u32 s6, s6, {32*131072}')
        for mt in range(4):
            d = Q.FX + 4*n; n += 1; c = Q.acc(mt, 2*p); r = vr(RR+2*mt, 2)
            for i in range(0, 8, 2): k(f'v_pk_mul_f32 {vr(c+i,2)}, {vr(c+i,2)}, {r} op_sel_hi:[1,0]')
            for i in range(0, 8, 2): k(f'v_pk_fma_f32 {vr(c+i,2)}, {vr(CC+8*p+i,2)}, {r}, {vr(c+i,2)} op_sel:[0,1,0]')
            Q.pack_pair(Q.acc(mt, 2*p), Q.acc(mt, 2*p+1), d)
            k(f'buffer_store_dwordx4 {vr(d,4)}, v4, s[16:19], s6 offen offset:{mt*1024} sc1' if p else f'ds_write_b128 v5, {vr(d,4)} offset:{mt*1024}')
    k.stamp(24); k.arrive(0); k.stamp(25)
    k(f'{k.lab("attn")}:')
    attn(k)
    k(f's_cmp_lt_u32 s3, 4\ns_cbranch_scc1 {k.lab("cc")}')
    C.loader(S_WS, O_, S_WO, 0, 2*MB, lambda: k.sync([(1, 4, 5, 8)], 16), st=7, pf=PF('C'), pub=(6, 5, 4))
    D.loader(S_WS, H_, S_WS, WP, 0, lambda: k.sync([(2, 4, 5, 4)], 16), pre=win_pre(k), st=10, pf=PF('D'), dep0=lambda: k.sync([(6, 5, 4, 0)], 16))
    E.loader(S_WSP, 0, S_WS, Z2, 0, lambda: k.sync([(3, 4, 5, 4), (4, 5, 4, 4)], 16), depA=False, st=16)
    F.loader(S_WS, U_, S_WOUT, 0, 1792*2048, lambda: k.sync([(5, 4, 5, 4)], 16), st=19)
    k.stamp_out(); k(f's_endpgm\n{k.lab("cc")}:')
    res_compute(C, 7, S_X, 0, S_WS, H_, repack(k))
    k.srd(16, S_WS, Z2, 8*MB)
    D.csetup()
    k(f's_mov_b32 s48, 0xbdd2d3e8\ns_mov_b32 s49, s48\ns_cmp_eq_u32 s31, 1\ns_cbranch_scc1 {k.lab("d1")}')
    win_compute(D, 0); k(f's_branch {k.lab("ce")}\n{k.lab("d1")}:'); win_compute(D, 1)
    k(f'{k.lab("ce")}:')
    sp_compute(E)
    res_compute(F, 19, S_WS, H_, S_OUT, 0, False)
    if o.get('ts'): k('s_waitcnt vmcnt(0)'); k.stamp(22)
    k.stamp_out(); k(f'{k.lab("end")}:\ns_endpgm')
    return k
```

```python
MB = 1 << 20
XN, QKV, O_, H_, Z1, Z2, U_, CS, ST = 0, 4*MB, 16*MB, 20*MB, 24*MB, 32*MB, 40*MB, 56*MB, 57*MB
FL = ST + 32768; LS = ST + 98304; CS2 = CS + 524288; WP = Z1
S_X, S_WQKV, S_WO, S_WIN, S_WSP, S_BSP, S_WOUT, S_OUT, S_WS = 64, 66, 68, 72, 74, 76, 78, 80, 84
P_X, P_WQKV, P_WO, P_WIN, P_WSP, P_BSP, P_WOUT, P_OUT, P_DBG, P_WS = 0, 8, 16, 32, 40, 48, 56, 64, 72, 80

OPT = {}
class K:
    def __init__(s, name, grid, block, lds, vgpr):
        s.name, s.grid, s.block, s.lds, s.vgpr = name, grid, block, lds, vgpr
        s.L = []
    def __call__(s, txt):
        for l in txt.strip('\n').split('\n'):
            l = l.strip()
            if l: s.L.append(l if l.endswith(':') else '    ' + l)
    def lab(s, x): return f'L_{x}'
    def ptr(s, sreg, slot): s(f's_load_dwordx2 s[{sreg}:{sreg+1}], s[0:1], {slot}')
    def srd(s, d, p, off, size, soff=None):
        s(f's_add_u32 s{d}, s{p}, {off}\ns_addc_u32 s{d+1}, s{p+1}, 0')
        if soff is not None: s(f's_add_u32 s{d}, s{d}, s{soff}\ns_addc_u32 s{d+1}, s{d+1}, 0')
        s(f's_mov_b32 s{d+2}, {size}\ns_mov_b32 s{d+3}, 0x20000')
    def stamp(s, i):
        if OPT.get('ts'): s(f's_memtime s[88:89]\ns_memrealtime s[90:91]\ns_waitcnt lgkmcnt(0)\nv_writelane_b32 v255, s88, {2*i}\nv_writelane_b32 v255, s90, {2*i+1}')
    def stamp_out(s):
        if not OPT.get('ts'): return
        s.srd(88, 84, 60*MB, MB)
        s('s_lshl_b32 s92, s2, 3\ns_add_u32 s92, s92, s3\ns_lshl_b32 s92, s92, 8\nv_lshlrev_b32 v1, 2, v0\nbuffer_store_dword v255, v1, s[88:91], s92 offen')
    def prefetch(s, p, off, sz, nwv=4, wv=29):
        if isinstance(off, tuple):
            ld, sr, sm, wm, step, n = off
            s.srd(96, p, 0, sz)
            s(f's_mul_i32 s6, s{sr}, {sm}\ns_mul_i32 s7, s{wv}, {wm}\ns_add_u32 s6, s6, s7\nv_lshrrev_b32 v252, 1, v0\nv_mul_u32_u24 v252, {ld}, v252\nv_and_b32 v251, 1, v0\nv_lshl_add_u32 v252, v251, 6, v252')
            for i in range(n): s(f'buffer_load_dword v253, v252, s[96:99], s6 offen\ns_add_u32 s6, s6, {step}')
            return n
        per = sz // (256*nwv); n = -(-per // 4096); st = per // n // 64
        s.srd(96, p, off, sz)
        s(f's_mul_i32 s6, s2, {nwv}\ns_add_u32 s6, s6, s{wv}\ns_mul_i32 s6, s6, {per}\nv_mul_u32_u24 v252, {st}, v0')
        for i in range(n): s(f'buffer_load_dword v253, v252, s[96:99], s6 offen offset:{i*st*64}')
        return n
    def uid(s, x): OPT['n'] = OPT.get('n', 0) + 1; return s.lab(f'{x}{OPT["n"]}')
    def arrive(s, ph):
        s(f'v_mov_b32 v3, 1\ns_waitcnt vmcnt(0)\ns_mov_b64 exec, 1\nds_add_u32 v254, v3 offset:{8*ph}\ns_mov_b64 exec, -1')
    def spin(s, off, val, t):
        lb = s.uid('spin')
        s(f'''{lb}:
        ds_read_b32 v{t}, v254 offset:{off}
        s_sub_u32 s37, s37, 1
        s_cselect_b32 s37, 0, s37
        s_cbranch_scc1 {lb}x
        s_waitcnt lgkmcnt(0)
        v_readfirstlane_b32 s6, v{t}
        s_cmp_ge_u32 s6, {val}
        s_cbranch_scc1 {lb}x
        s_sleep 1
        s_branch {lb}
        {lb}x:
        s_waitcnt lgkmcnt(0)''')
    def publish(s, ph, grp, mem):
        o = s.uid('pub')
        s(f's_cmp_lg_u32 s3, 4\ns_cbranch_scc1 {o}\ns_lshl_b32 s6, s{grp}, 7\ns_add_u32 s6, s6, s{mem}\ns_lshl_b32 s6, s6, 2\ns_add_u32 s6, s6, {ph*8192}\nv_mov_b32 v3, 1\ns_mov_b64 exec, 1\nbuffer_store_dword v3, off, s[60:63], s6 sc1\ns_mov_b64 exec, -1\n{o}:')
    def sync(s, steps, t, mask=None):
        o = s.uid('oth')
        s(f's_cmp_lg_u32 s3, 4\ns_cbranch_scc1 {o}\nv_and_b32 v{t+1}, 15, v0\nv_lshlrev_b32 v{t+1}, 2, v{t+1}')
        for ph, grp, mem, n in steps:
            lb = s.uid('poll')
            if n: s.spin(8*ph, n, t); s.publish(ph, grp, mem)
            s(f's_lshl_b32 s6, s{grp}, 9\ns_add_u32 s6, s6, {ph*8192}\n{lb}:\nbuffer_load_dword v{t}, v{t+1}, s[60:63], s6 offen sc1')
            s(f's_sub_u32 s37, s37, 1\ns_cselect_b32 s37, 0, s37\ns_cbranch_scc1 {lb}x\ns_waitcnt vmcnt(0)\nv_cmp_eq_u32 vcc, 1, v{t}')
            if mask: s(f's_or_b64 vcc, vcc, {mask}')
            s(f's_cmp_eq_u64 vcc, -1\ns_cbranch_scc1 {lb}x\ns_sleep {OPT.get("slp", 2)}\ns_branch {lb}\n{lb}x:\nds_write_b32 v254, v254 offset:{8*ph+4}')
        s(f's_branch {o}x\n{o}:'); s.spin(8*steps[-1][0]+4, 1, t)
        s(f'{o}x:')
    def text(s):
        n = s.name + '_kernel'
        return f'.globl {n}\n.p2align 8\n.type {n},@function\n{n}:\n' + '\n'.join(s.L) + '\n'
    def desc(s):
        return f'''.p2align 6
.amdhsa_kernel {s.name}_kernel
  .amdhsa_next_free_vgpr {s.vgpr}
  .amdhsa_next_free_sgpr 102
  .amdhsa_accum_offset {(s.vgpr+3)//4*4}
  .amdhsa_group_segment_fixed_size 0
  .amdhsa_kernarg_size 88
  .amdhsa_user_sgpr_count 2
  .amdhsa_user_sgpr_kernarg_segment_ptr 1
  .amdhsa_system_sgpr_workgroup_id_x 1
.end_amdhsa_kernel
'''
    def launch(s): return f'; @launch kernel={s.name}_kernel grid=({s.grid},1,1) block=({s.block},1,1) lds={s.lds}\n'

def vr(a, n=1): return f'v{a}' if n == 1 else f'v[{a}:{a+n-1}]'

class Gemm:
    def __init__(g, k, name, BN, Kd, lda, ldw, WR, WC, NS, wmode, tncol=None, segs=(), afrag=False):
        g.afrag = afrag
        g.BN, g.Kd, g.lda, g.ldw, g.WR, g.WC, g.NS, g.wmode = BN, Kd, lda, ldw, WR, WC, NS, wmode
        g.MT = 8//WR; g.NT = BN//16//WC; g.nk = Kd//64; g.tncol = tncol or BN*2; g.segs = segs
        g.STG = 16384 + BN*128; g.XL = g.STG*NS; g.k = k; g.name = name
        assert g.XL <= 163840
        g.ACC = 16; g.FX = g.ACC + g.MT*g.NT*4; g.FS = (g.MT+g.NT)*4; g.FY = g.FX + g.FS; g.FREE = g.FY + g.FS
    def lab(g, x): return g.k.lab(g.name + x)
    def acc(g, mt, nt): return g.ACC + (mt*g.NT + nt)*4
    def woffs(g, dst=range(8, 16)):
        k = g.k; BN = g.BN
        npw = BN//8; nw = (npw+3)//4
        for i in range(nw):
            d = dst[i]
            k(f's_lshl_b32 s6, s29, 6\ns_add_u32 s6, s6, {256*i}\nv_add_u32 v3, s6, v0')
            if g.wmode == 'frag': k(f'v_lshlrev_b32 v{d}, 4, v3'); continue
            c = BN//8; M = (65536+c-1)//c
            assert all((q*M) >> 16 == q//c for q in range(64*c))
            k(f'''s_mov_b32 s6, {M}
            v_mul_u32_u24 v20, s6, v3
            v_lshrrev_b32 v20, 16, v20
            v_mul_u32_u24 v21, {c}, v20
            v_sub_u32 v21, v3, v21
            v_bfe_u32 v22, v20, 3, 1''')
            if BN != 224: k('v_bfe_u32 v23, v20, 1, 1\nv_lshl_add_u32 v22, v22, 1, v23')
            k(f'v_lshlrev_b32 v22, 1, v22\nv_xor_b32 v21, v21, v22')
            k(f'v_mov_b32 v22, {g.segs[0][1] if g.segs else 0}')
            for th, dl in g.segs[1:]: k(f'v_cmp_le_u32 vcc, {th}, v21\nv_mov_b32 v23, {dl}\ns_nop 0\nv_cndmask_b32 v22, v22, v23, vcc')
            k(f'''v_lshl_add_u32 v21, v21, 4, v22
            s_mov_b32 s6, {g.ldw}
            v_mad_u32_u24 v{d}, v20, s6, v21''')
    def loader(g, pa, offa, pw, offw, szw, dep=None, depA=True, pre=None, st=None, tail=None, dep0=None, pf=(), pub=None):
        k = g.k; NS = g.NS; BN = g.BN
        k(f's_mul_i32 s6, s4, {128*g.lda}')
        k.srd(8, pa, offa, 128*g.lda, 6)
        if g.wmode == 'tr':
            k(f's_mul_i32 s6, s5, {g.tncol}'); k.srd(12, pw, offw, szw, 6); k(f's_sub_u32 s14, s14, s6')
        else:
            k(f's_mul_i32 s6, s5, {g.nk*BN*128}'); k.srd(12, pw, offw, g.nk*BN*128, 6)
        k(f'''v_lshrrev_b32 v3, 3, v0
        s_lshl_b32 s6, s29, 3
        v_add_u32 v3, s6, v3
        v_lshrrev_b32 v4, 1, v3
        v_xor_b32 v4, v4, v0
        v_and_b32 v4, 7, v4
        v_lshlrev_b32 v4, 4, v4
        s_mov_b32 s6, {g.lda}
        v_mad_u32_u24 v4, v3, s6, v4''')
        if g.afrag: k('s_lshl_b32 s6, s29, 10\nv_lshl_add_u32 v4, v0, 4, s6')
        for i in range(1, 4): k(f'v_add_u32 v{4+i}, {4096*i if g.afrag else 32*g.lda*i}, v4')
        npw = BN//8; nw = (npw+3)//4; g.woffs()
        wstep = 64*g.ldw if g.wmode == 'tr' else BN*128
        k(f's_lshl_b32 s32, s29, 10\ns_mov_b32 s33, 0\ns_mov_b32 s34, 0\ns_add_u32 s35, s32, {g.XL}')
        rot = OPT.get('rot', {}).get(g.name); astep = 16384 if g.afrag else 128
        if rot: k(f's_mul_i32 s6, s{rot[0]}, {rot[1]}\ns_and_b32 s6, s6, 15\ns_mul_i32 s33, s6, {astep}\ns_mul_i32 s34, s6, {wstep}')
        sa, sw = (' sc1' if dep and depA else ''), (' sc1' if dep0 or (dep and not depA) else '')
        if dep0: dep0()
        def isA(o):
            for i in range(4): k(f's_add_u32 m0, s32, {o+4096*i}\ns_nop 0\nbuffer_load_dwordx4 v{4+i}, s[8:11], s33 offen{sa} lds')
            k(f's_add_u32 s33, s33, {astep}')
            if rot: k(f's_cmp_eq_u32 s33, {astep*g.nk}\ns_cselect_b32 s33, 0, s33')
        def isW(o, n):
            for i in range(n): k(f's_add_u32 m0, s32, {o+16384+4096*i}\ns_nop 0\nbuffer_load_dwordx4 v{8+i}, s[12:15], s34 offen{sw} lds')
            k(f's_add_u32 s34, s34, {wstep}')
            if rot: k(f's_cmp_eq_u32 s34, {wstep*g.nk}\ns_cselect_b32 s34, 0, s34')
        def issue(n):
            isA(0); isW(0, n)
            k(f's_add_u32 s32, s32, {g.STG}\ns_cmp_ge_u32 s32, s35\ns_cselect_b32 s6, {g.XL}, 0\ns_sub_u32 s32, s32, s6')
        variants = [(nw, 'a')]
        if npw % 4:
            k(f's_cmp_ge_u32 s29, {npw % 4}\ns_cbranch_scc1 {g.lab("ldb")}')
            variants.append((nw-1, 'b'))
        for n, t in variants:
            P = 4+n; nd = P
            k(f'{g.lab("ld"+t)}:')
            if dep:
                nd = 4 if depA else n
                for s in range(NS-1): isW(s*g.STG, n) if depA else isA(s*g.STG)
                dep()
                if st: k.stamp(st)
                if pre: pre(0)
                for s in range(NS-1): isA(s*g.STG) if depA else isW(s*g.STG, n)
            else:
                for s in range(NS-1): isA(s*g.STG); isW(s*g.STG, n)
            k(f's_add_u32 s32, s32, {g.STG*(NS-1)}')
            if pre: k(f's_waitcnt vmcnt({nd*(NS-1)})'); pre(1)
            for s in range(NS-2): k(f's_waitcnt vmcnt({nd*(NS-2-s)+P*s})\ns_barrier'); issue(n)
            k(f's_mov_b32 s36, {g.nk-2*NS+3}\n{g.lab("lp"+t)}:')
            k(f's_waitcnt vmcnt({P*(NS-2)})\ns_barrier'); issue(n)
            k(f's_sub_u32 s36, s36, 1\ns_cmp_lg_u32 s36, 0\ns_cbranch_scc1 {g.lab("lp"+t)}')
            xo = 0 if tail else sum(k.prefetch(*x) for x in pf)
            if pub: k.publish(*pub)
            for s in range(NS-2, -1, -1):
                k(f's_waitcnt vmcnt({P*s + xo})\ns_barrier')
                if tail and s == OPT.get('tl', 1): xo = tail() + sum(k.prefetch(*x) for x in pf)
            if t == 'a' and len(variants) > 1: k(f's_branch {g.lab("ldx")}')
        k(f'{g.lab("ldx")}:\ns_barrier')
    def csetup(g):
        k = g.k; S = g.BN*2
        k(f's_and_b32 s31, s3, {g.WC-1}\ns_lshr_b32 s30, s3, {g.WC.bit_length()-1}')
        k(f'''v_lshrrev_b32 v3, 1, v1
        v_xor_b32 v3, v3, v2
        v_lshlrev_b32 v3, 4, v3
        v_lshl_add_u32 v3, v1, 7, v3
        s_mul_i32 s6, s30, {g.MT*2048}
        v_add_u32 v4, s6, v3
        v_xor_b32 v5, 64, v4''')
        if g.afrag: k(f's_mul_i32 s6, s30, {g.MT*1024}\nv_lshl_add_u32 v4, v0, 4, s6\nv_add_u32 v5, 8192, v4')
        if g.wmode == 'frag':
            g.NB = 1
            k(f'v_lshlrev_b32 v6, 4, v0\ns_mul_i32 s6, s31, {g.NT*1024}\ns_add_u32 s6, s6, 16384\nv_add_u32 v6, s6, v6')
        else:
            g.NB = min(g.NT, 2 if g.BN == 224 else 4)
            k(f'''v_lshrrev_b32 v10, 2, v1
            v_lshl_add_u32 v11, v2, 3, v10
            v_mul_u32_u24 v11, {S}, v11
            v_and_b32 v12, 3, v0
            v_lshl_add_u32 v11, v12, 3, v11
            v_add_u32 v11, 16384, v11
            v_and_b32 v12, 1, v2''')
            if g.BN != 224: k('v_lshrrev_b32 v10, 1, v10\nv_lshl_add_u32 v12, v12, 1, v10')
            for j in range(g.NB):
                k(f's_mul_i32 s6, s31, {g.NT}\ns_add_u32 s6, s6, {j}\nv_xor_b32 v10, s6, v12\nv_lshl_add_u32 v{6+j}, v10, 5, v11')
        for i in range(g.MT*g.NT*4): k(f'v_mov_b32 v{g.ACC+i}, 0')
        k('s_mov_b32 s32, 0')
    def reads(g, kk, F):
        r = []; S = g.BN*2
        ra = [f'ds_read_b128 {vr(F+4*mt,4)}, v{4+kk} offset:{mt*(1024 if g.afrag else 2048)}' for mt in range(g.MT)]
        for nt in range(g.NT):
            d = F + 4*(g.MT+nt)
            if g.wmode == 'frag': r.append(f'ds_read_b128 {vr(d,4)}, v6 offset:{(kk*(g.BN//16)+nt)*1024}')
            else:
                for h in range(2):
                    r.append(f'ds_read_b64_tr_b16 {vr(d+2*h,2)}, v{6+nt % g.NB} offset:{(32*kk+4*h)*S + (nt//g.NB)*g.NB*32}')
        return ra + r
    def mfmas(g, F, T):
        r = []
        for nt in range(g.NT):
            for mt in range(g.MT):
                a, w, c = vr(F+4*mt, 4), vr(F+4*(g.MT+nt), 4), vr(g.acc(mt, nt), 4)
                r.append(f'v_mfma_f32_16x16x32_bf16 {c}, {a}, {w}, {c}' if nt in T else f'v_mfma_f32_16x16x32_bf16 {c}, {w}, {a}, {c}')
        return r
    def mix(g, ms, rs, extra=()):
        k = g.k; rs = list(rs); extra = list(extra)
        per = -(-len(rs) // max(1, len(ms)-min(6, len(ms)//2)))
        for m in ms:
            k(m)
            if rs:
                for _ in range(per):
                    if rs: k(rs.pop(0))
            else:
                for _ in range(2):
                    if extra: k(extra.pop(0))
        for x in rs + extra: k(x)
    def mainloop(g, st, T=(), tag='', extra=(), vm=''):
        k = g.k
        adv = [f's_add_u32 s32, s32, 1', f's_cmp_eq_u32 s32, {g.NS}', f's_mov_b32 s6, {g.STG}', f's_cselect_b32 s6, {-(g.NS-1)*g.STG}, s6',
               f's_cselect_b32 s32, 0, s32'] + [f'v_add_u32 v{i}, s6, v{i}' for i in range(4, 6+g.NB)]
        k.stamp(st); k('s_barrier'); k.stamp(st+1)
        for r in g.reads(0, g.FX): k(r)
        k(f's_mov_b32 s36, {g.nk}\ns_branch {g.lab("mid"+tag)}\n.p2align 4\n{g.lab("loop"+tag)}:\ns_barrier')
        g.mix(g.mfmas(g.FY, T), g.reads(0, g.FX), extra)
        k(f'{g.lab("mid"+tag)}:\ns_waitcnt lgkmcnt(0)')
        g.mix(g.mfmas(g.FX, T), g.reads(1, g.FY), adv + ['s_sub_u32 s36, s36, 1', 's_cmp_lg_u32 s36, 0'])
        k(f's_waitcnt {vm}lgkmcnt(0)\ns_cbranch_scc1 {g.lab("loop"+tag)}\ns_barrier')
        for m in g.mfmas(g.FY, T): k(m)
        k('s_nop 7'); k.stamp(st+2)
    def pack_pair(g, c0, c1, d):
        g.k(f'''v_cvt_pk_bf16_f32 v{d}, v{c0}, v{c0+1}
        v_cvt_pk_bf16_f32 v{d+1}, v{c0+2}, v{c0+3}
        v_cvt_pk_bf16_f32 v{d+2}, v{c1}, v{c1+1}
        v_cvt_pk_bf16_f32 v{d+3}, v{c1+2}, v{c1+3}
        s_nop 1
        v_permlane16_swap_b32 v{d}, v{d+2}
        v_permlane16_swap_b32 v{d+1}, v{d+3}''')
    def pg16(g, d):
        g.k(f'v_and_b32 v{d}, 1, v2\nv_lshlrev_b32 v{d}, 5, v{d}\nv_lshrrev_b32 v3, 1, v2\nv_lshl_add_u32 v{d}, v3, 4, v{d}')
    def pkaddr(g, d):
        g.pg16(d); g.k(f'v_lshlrev_b32 v{d}, 4, v{d}\nv_lshl_add_u32 v{d}, v1, 4, v{d}')
```

```python
from core import *
from util import *
from k012 import unpack
ZS, TB, QS, SY, WSG = 122880, 151552, 98304, 155648, 122880
WO = [16, 17, 18, 19, 24, 25, 26]

def PF(c): return [x for x, w in zip(((S_WSP, 0, 4*MB), (S_WSP, 4*MB, 4*MB), (S_WOUT, 0, 1792*2048)), OPT.get('pf', 'DCD')) if w == c]

def attn(k):
    S0, OA, LA, QF, KF, ON = 32, 176, 192, 208, 216, 248
    k(f'''s_lshr_b32 s16, s3, 2
    s_and_b32 s17, s3, 3
    s_lshl_b32 s6, s5, 1
    s_add_u32 s18, s6, s16
    s_lshl_b32 s19, s18, 17
    s_lshl_b32 s26, s4, 2
    v_add_u32 v4, 2, v1
    v_subrev_u32 v4, s4, v4
    v_cmp_le_u32 s[56:57], 3, v4
    s_add_u32 s26, s26, s17
    v_and_b32 v1, 31, v0
    v_lshrrev_b32 v2, 5, v0''')
    k.srd(12, S_WS, QKV+32*131072, 131072, 19); k.srd(20, S_WS, QKV+64*131072, 131072, 19); k.srd(40, S_WS, O_, 4*MB)
    k('s_mov_b32 s24, 0xf149f2ca\nv_mov_b32 v6, s24\nv_lshlrev_b32 v7, 2, v2\nv_sub_u32 v7, v1, v7')
    k('s_cmp_lt_u32 s26, 8\ns_cselect_b32 s25, s24, 0\nv_mov_b32 v8, s25')
    for i in range(16):
        kl = 8*(i//4) + i % 4
        k(f'v_cmp_le_i32 vcc, {kl}, v7\ns_nop 1\nv_cndmask_b32 v{S0+128+i}, v6, 0, vcc\nv_cndmask_b32 v{S0+i}, v8, v6, vcc')
    for b in range(1, 8):
        k(f's_add_u32 s27, s26, {b}\ns_cmp_lt_u32 s27, 8\ns_cselect_b32 s27, s24, 0')
        for i in range(16): k(f'v_mov_b32 v{S0+16*b+i}, s27')
    for i in range(32): k(f'v_mov_b32 v{OA+i}, 0')
    for i in range(4): k(f'v_mov_b32 v{ON+i}, 0x3f803f80')
    k(f'''v_lshrrev_b32 v9, 2, v1
    v_and_b32 v9, 3, v9
    v_xor_b32 v9, v9, v2
    v_lshlrev_b32 v9, 4, v9
    v_lshl_add_u32 v9, v1, 6, v9
    s_mul_i32 s27, s16, 24576
    s_lshl_b32 s6, s17, 11
    s_add_u32 s7, s6, s27
    v_add_u32 v9, s7, v9
    v_xor_b32 v10, 32, v9
    v_bfe_u32 v11, v0, 2, 2
    v_lshl_add_u32 v11, v2, 2, v11
    v_lshlrev_b32 v11, 6, v11
    v_bfe_u32 v12, v0, 4, 1
    v_lshl_add_u32 v11, v12, 5, v11
    v_and_b32 v12, 3, v0
    v_lshl_add_u32 v11, v12, 3, v11
    s_add_u32 s7, s7, 49152
    v_add_u32 v11, s7, v11
    v_lshlrev_b32 v12, 6, v1
    v_lshl_add_u32 v12, v2, 4, v12
    s_lshl_b32 s28, s3, 11
    s_add_u32 s28, s28, {QS}
    v_add_u32 v12, s28, v12
    s_lshl_b32 s6, s17, 10
    s_add_u32 s27, s27, s6
    s_lshl_b32 s7, s4, 13
    s_add_u32 s6, s6, s7
    s_sub_u32 s6, s6, 16384
    v_lshlrev_b32 v4, 4, v0
    v_and_b32 v5, 48, v0
    v_xor_b32 v5, v4, v5
    v_add_u32 v4, s6, v4
    v_add_u32 v5, s6, v5''')
    k.sync([(0, 5, 4, 4)], 14, 's[56:57]'); k.stamp(4)
    for i in range(6): k(f's_add_u32 m0, s27, {4096*i}\ns_nop 0\nbuffer_load_dwordx4 v5, s[12:15], 0 offen sc1 lds\nv_add_u32 v5, 4096, v5')
    for i in range(6): k(f's_add_u32 m0, s27, {49152+4096*i}\ns_nop 0\nbuffer_load_dwordx4 v4, s[20:23], 0 offen sc1 lds\nv_add_u32 v4, 4096, v4')
    k('s_waitcnt vmcnt(6)\ns_barrier'); k.stamp(5)
    k(f'ds_read_b128 {vr(QF,4)}, v12\nds_read_b128 {vr(QF+4,4)}, v12 offset:32')
    def kread(b): k(f'ds_read_b128 {vr(KF+8*(b%4),4)}, v9 offset:{2048*b}\nds_read_b128 {vr(KF+8*(b%4)+4,4)}, v10 offset:{2048*b}')
    def vmax(b):
        s = S0+16*b
        if b == 0: k(f'v_max_f32 v13, v{s}, v{s+1}')
        for i in range(1 if b == 0 else 0, 8): k(f'v_max3_f32 v13, v{s+2*i}, v{s+2*i+1}, v13')
    for b in range(3): kread(b)
    for b in range(9):
        if b+3 < 9: kread(b+3)
        k(f's_waitcnt lgkmcnt({2*min(3, 8-b)})')
        for t in range(2): k(f'v_mfma_f32_32x32x16_bf16 {vr(S0+16*b,16)}, {vr(KF+8*(b%4)+4*t,4)}, {vr(QF+4*t,4)}, {vr(S0+16*b,16)}')
        if b == 2: k('s_nop 1')
        if b >= 2: vmax(b-2)
    k('s_waitcnt vmcnt(0)\ns_barrier')
    k.stamp(28); k('s_cmp_lt_u32 s3, 4\ns_cbranch_scc1 L_nst')
    for i in range(7): k(f's_add_u32 m0, s32, {WSG+4096*i}\ns_nop 0\nbuffer_load_dwordx4 v{WO[i]}, s[44:47], s33 offen lds')
    k('L_nst:')
    for x in PF('T'): k.prefetch(*x, 8, 3)
    k.stamp(29)
    def vread(b):
        for t in range(2):
            for j in range(2): k(f'ds_read_b64_tr_b16 {vr(KF+8*(b%4)+4*t+2*j,2)}, v11 offset:{2048*b+1024*t+512*j}')
    vread(0); vread(1); k('s_nop 3'); vmax(7); vmax(8)
    k(f'''v_mov_b32 v14, v13
    s_mov_b32 s24, 0x3e8293ee
    s_mov_b32 s25, s24
    v_permlane32_swap_b32 v14, v13
    v_max_f32 v13, v13, v14
    v_mul_f32_e64 v14, s24, -v13
    v_mov_b32 v15, v14''')
    for b in range(9):
        s = S0+16*b
        if b+2 < 9: vread(b+2)
        for i in range(8): k(f'v_pk_fma_f32 {vr(s+2*i,2)}, {vr(s+2*i,2)}, s[24:25], v[14:15]')
        for i in range(16): k(f'v_exp_f32 v{s+i}, v{s+i}')
        for i in range(8): k(f'v_cvt_pk_bf16_f32 v{s+i}, v{s+2*i}, v{s+2*i+1}')
        k(f's_waitcnt lgkmcnt({4*min(2, 8-b)})\ns_nop 0')
        for t in range(2):
            k(f'v_mfma_f32_32x32x16_bf16 {vr(OA,16)}, {vr(KF+8*(b%4)+4*t,4)}, {vr(s+4*t,4)}, {vr(OA,16)}')
            k(f'v_mfma_f32_32x32x16_bf16 {vr(LA,16)}, {vr(ON,4)}, {vr(s+4*t,4)}, {vr(LA,16)}')
    k(f'''v_lshrrev_b32 v4, 4, v1
    v_lshl_add_u32 v4, v4, 2, v2
    v_and_b32 v1, 15, v0
    v_lshl_add_u32 v4, v4, 4, v1
    v_lshlrev_b32 v4, 4, v4
    s_lshl_b32 s6, s4, 18
    s_lshl_b32 s7, s18, 13
    s_add_u32 s6, s6, s7
    s_lshl_b32 s7, s17, 11
    s_add_u32 s6, s6, s7
    v_lshrrev_b32 v2, 4, v0
    s_nop 7
    v_rcp_f32 v13, v{LA}
    s_nop 0''')
    for i in range(16): k(f'v_mul_f32 v{OA+i}, v{OA+i}, v13')
    for i in range(8): k(f'v_cvt_pk_bf16_f32 v{16+i}, v{OA+2*i}, v{OA+2*i+1}')
    k(f'''s_nop 1
    v_permlane32_swap_b32 v16, v18
    v_permlane32_swap_b32 v17, v19
    v_permlane32_swap_b32 v20, v22
    v_permlane32_swap_b32 v21, v23
    buffer_store_dwordx4 v[16:19], v4, s[40:43], s6 offen sc1
    buffer_store_dwordx4 v[20:23], v4, s[40:43], s6 offen offset:512 sc1''')
    k.stamp(6); k('s_waitcnt vmcnt(2)\ns_barrier'); k.arrive(1)

def repack(k):
    k.srd(8, S_WS, WP, 7*MB); k.srd(12, S_WS, CS2, 16*16*896)
    k(f'''v_lshrrev_b32 v5, 2, v1
    v_lshl_add_u32 v5, v2, 3, v5
    v_mul_u32_u24 v5, 448, v5
    v_and_b32 v6, 3, v0
    v_lshl_add_u32 v5, v6, 3, v5
    v_and_b32 v6, 1, v2
    v_xor_b32 v6, s3, v6
    v_lshl_add_u32 v5, v6, 5, v5
    v_add_u32 v5, {WSG}, v5''')
    for j in range(4):
        for kk in range(2):
            for h in range(2): k(f'ds_read_b64_tr_b16 {vr(128+8*j+4*kk+2*h,2)}, v5 offset:{(32*kk+4*h)*448+128*j}')
    k(f'''s_lshl_b32 s6, s5, 4
    s_add_u32 s6, s6, s4
    s_mul_i32 s6, s6, 28672
    s_lshl_b32 s7, s3, 10
    s_add_u32 s26, s6, s7
    s_lshl_b32 s7, s4, 4
    s_add_u32 s7, s7, s5
    s_mul_i32 s7, s7, 896
    s_lshl_b32 s27, s3, 6
    s_add_u32 s27, s7, s27
    v_lshlrev_b32 v176, 4, v0
    v_add_u32 v177, 14336, v176
    v_lshlrev_b32 v178, 2, v1
    s_waitcnt lgkmcnt(0)''')
    for j in range(4):
        for kk in range(2): k(f'v_mfma_f32_16x16x32_bf16 {vr(160+4*j,4)}, v[248:251], {vr(128+8*j+4*kk,4)}, {vr(160+4*j,4) if kk else 0}')
    k = K('tmp', 0, 0, 0, 0); k('s_nop 4')
    if OPT.get('rp', 'go') == 'go': k.spin(12, 1, 179)
    for j in range(4):
        if j == 3: k('s_cmp_ge_u32 s3, 2\ns_cbranch_scc1 L_rp')
        k(f'''buffer_store_dwordx4 {vr(128+8*j,4)}, v176, s[8:11], s26 offen sc1
        buffer_store_dwordx4 {vr(132+8*j,4)}, v177, s[8:11], s26 offen sc1
        s_add_u32 s26, s26, 4096
        s_mov_b64 exec, 0xffff
        buffer_store_dword v{160+4*j}, v178, s[12:15], s27 offen offset:{256*j} sc1
        s_mov_b64 exec, -1''')
    k('L_rp:')
    return '\n'.join(k.L)

def res_compute(g, st, res_ptr, res_off, out_ptr, out_off, stats):
    k = g.k; R = g.FREE; sc = ' sc1' if stats else ''
    k.srd(16, res_ptr, res_off, 4*MB); k.srd(40, out_ptr, out_off, 4*MB); k.srd(44, S_WS, ST, 32768)
    g.pg16(13)
    k(f'''v_lshl_add_u32 v13, v1, 11, v13
    v_add_u32 v14, 32768, v13
    s_lshl_b32 s38, s4, 18
    s_lshl_b32 s6, s3, 16
    s_add_u32 s38, s38, s6
    s_lshl_b32 s6, s5, 7
    s_add_u32 s38, s38, s6
    s_lshl_b32 s50, s4, 18
    s_lshl_b32 s6, s5, 14
    s_add_u32 s50, s50, s6
    s_lshl_b32 s6, s3, 11
    s_add_u32 s50, s50, s6
    s_add_u32 s51, s50, 8192''')
    g.pkaddr(15)
    rm = lambda mt, p, sr: f'v{13+mt}, s[{sr}:{sr+3}], s38 offen offset:{64*p}'
    pk = lambda mt, p, sr: f'v15, s[{sr}:{sr+3}], s{50+p} offen offset:{1024*mt} sc1'
    ld, so = (rm, pk) if stats else (pk, rm)
    for mt in range(2):
        for p in range(2): k(f'buffer_load_dwordx4 {vr(R+8*mt+4*p,4)}, {ld(mt, p, 16)}')
    g.csetup()
    if stats: k(stats)
    g.mainloop(st, extra=[f's_cmp_lg_u32 s36, {g.nk-7}\ns_cbranch_scc1 L_nc\ns_waitcnt vmcnt(0)\nL_nc:'] if stats else [])
    k('s_waitcnt vmcnt(0)')
    T = g.FX
    for mt in range(2):
        for p in range(2):
            r = R+8*mt+4*p; c = g.acc(mt, 2*p); d = g.FY + 8*mt + 4*p
            k(f'v_permlane16_swap_b32 v{r}, v{r+2}\nv_permlane16_swap_b32 v{r+1}, v{r+3}')
            unpack(k, r, 4, T)
            for i in range(4): k(f'v_pk_add_f32 {vr(c+2*i,2)}, {vr(c+2*i,2)}, {vr(T+2*i,2)}')
            g.pack_pair(c, c+4, d)
            k(f'buffer_store_dwordx4 {vr(d,4)}, {so(mt, p, 40)}' + ('' if stats else OPT.get('om', '')))
    if not stats: return
    for mt in range(2):
        unpack(k, g.FY + 8*mt, 8, T)
        k(f'v_pk_mul_f32 {vr(T+16,2)}, {vr(T,2)}, {vr(T,2)}')
        for i in range(1, 8): k(f'v_pk_fma_f32 {vr(T+16,2)}, {vr(T+2*i,2)}, {vr(T+2*i,2)}, {vr(T+16,2)}\nv_pk_add_f32 {vr(T,2)}, {vr(T,2)}, {vr(T+2*i,2)}')
        k(f'v_add_f32 v{4+mt}, v{T}, v{T+1}\nv_add_f32 v{6+mt}, v{T+16}, v{T+17}')
    k(f'''v_lshrrev_b32 v8, 5, v0
    v_lshl_add_u32 v8, v8, 4, v1
    v_permlane32_swap_b32 v4, v5
    v_permlane32_swap_b32 v6, v7
    v_add_f32 v4, v4, v5
    v_add_f32 v6, v6, v7
    v_and_b32 v9, 1, v2
    v_lshlrev_b32 v9, 2, v9
    v_permlane16_swap_b32 v4, v6
    v_lshl_add_u32 v8, v8, 3, v9
    v_add_f32 v4, v4, v6
    s_lshl_b32 s6, s4, 10
    s_lshl_b32 s7, s3, 8
    s_add_u32 s6, s6, s7
    buffer_atomic_add_f32 v4, v8, s[44:47], s6 offen''')
    k.stamp(27); k.arrive(2)

def win_compute(g, wc):
    k = g.k; nz = 4 - wc; Z = list(range(nz)); Y = list(range(nz, 7))
    g.mainloop(10, Z, 'ab'[wc])
    F = g.FX; R4 = F; N4 = F+16; CT = F+32; T = F+40; PQ = F+44; RR = F+76; CC = F+84
    k(f'''s_lshl_b32 s6, s30, 8
    s_add_u32 s6, s6, {TB}
    v_lshl_add_u32 v4, v2, 4, s6
    v_lshl_add_u32 v14, v1, 2, s6
    s_mov_b32 s6, {TB+1024+448*wc}
    v_lshl_add_u32 v5, v1, 2, s6
    v_lshl_add_u32 v15, v2, 4, s6
    v_mov_b32 v10, 0xc0135761
    v_mov_b32 v11, v10''')
    def rd_rn(o):
        for mt in range(4): k(f'ds_read_b128 {vr(R4+4*mt,4)}, v4 offset:{64*mt}\nds_read_b128 {vr(N4+4*mt,4)}, v4 offset:{o+64*mt}')
    rd_rn(512)
    for nt in Z: k(f'ds_read_b32 v{CT+2*nt}, v5 offset:{64*nt}')
    k('s_waitcnt lgkmcnt(0)')
    for mt in range(4): k(f'ds_read_b32 v{RR+2*mt}, v14 offset:{64*mt}\nds_read_b32 v{RR+2*mt+1}, v14 offset:{512+64*mt}')
    for nt in Y: k(f'ds_read_b128 {vr(CC+4*(nt-nz),4)}, v15 offset:{64*nt}')
    for mt in range(4):
        P, Q = PQ + 8*mt, PQ + 8*mt + 4
        for nt in Z:
            c = g.acc(mt, nt)
            for i in (0, 2): k(f'v_pk_mul_f32 {vr(c+i,2)}, {vr(c+i,2)}, {vr(R4+4*mt+i,2)}')
            for i in (0, 2): k(f'v_pk_fma_f32 {vr(c+i,2)}, {vr(N4+4*mt+i,2)}, {vr(CT+2*nt,2)}, {vr(c+i,2)} op_sel_hi:[1,0,1]')
            gelu4(k, c, T)
            for i in (0, 2):
                if nt == 0: k(f'v_mov_b32 v{P+i}, v{c+i}\nv_mov_b32 v{P+i+1}, v{c+i+1}\nv_pk_mul_f32 {vr(Q+i,2)}, {vr(c+i,2)}, {vr(c+i,2)}')
                else: k(f'v_pk_add_f32 {vr(P+i,2)}, {vr(P+i,2)}, {vr(c+i,2)}\nv_pk_fma_f32 {vr(Q+i,2)}, {vr(c+i,2)}, {vr(c+i,2)}, {vr(Q+i,2)}')
    k(f'''v_bfe_u32 v6, v0, 3, 1
    v_lshlrev_b32 v6, 2, v6
    v_add_u32 v6, v6, v2
    v_lshlrev_b32 v6, 1, v6
    v_bfe_u32 v7, v0, 2, 1
    v_add_u32 v6, v6, v7
    v_lshlrev_b32 v6, 2, v6
    v_and_b32 v7, 3, v0
    v_add_lshl_u32 v6, v6, v7, 2
    s_mov_b32 s56, 0xaaaaaaaa
    s_mov_b32 s57, s56
    s_mov_b32 s58, 0xcccccccc
    s_mov_b32 s59, s58
    s_lshl_b32 s38, s4, 10
    s_lshl_b32 s7, s30, 9
    s_add_u32 s38, s38, s7
    s_add_u32 s38, s38, 16384''')
    dpp = lambda d, a, m, bm: k(f'v_add_f32_dpp v{d}, v{a}, v{a} {m} row_mask:0xf bank_mask:{bm}')
    for i in range(2):
        a, b = PQ + 16*i, PQ + 16*i + 8
        for j in range(8): dpp(a+j, a+j, 'row_ror:8', '0x3')
        for j in range(8): dpp(a+j, b+j, 'row_ror:8', '0xc')
        four = [a, a+1, a+4, a+5]
        for j in four: dpp(j, j, 'row_shl:4', '0x5')
        for j in four: dpp(j, j+2, 'row_shr:4', '0xa')
        for j in four: dpp(j, j, 'quad_perm:[2,3,0,1]', '0xf')
        for j in four: dpp(j, j, 'quad_perm:[1,0,3,2]', '0xf')
        k(f'''v_cndmask_b32 v{a}, v{a}, v{a+4}, s[56:57]
        v_cndmask_b32 v{a+1}, v{a+1}, v{a+5}, s[56:57]
        v_cndmask_b32 v{a}, v{a}, v{a+1}, s[58:59]
        buffer_atomic_add_f32 v{a}, v6, s[44:47], s38 offen offset:{256*i}''')
    k(f's_mul_i32 s6, s30, {4*3584}\ns_add_u32 s6, s6, {ZS}\nv_lshl_add_u32 v14, v0, 3, s6\ns_waitcnt lgkmcnt(0)')
    def z1(mt):
        r = vr(RR+2*mt, 2)
        for nt in Y:
            c = g.acc(mt, nt)
            for i in (0, 2): k(f'v_pk_mul_f32 {vr(c+i,2)}, {vr(c+i,2)}, {r} op_sel_hi:[1,0]')
            for i in (0, 2): k(f'v_pk_fma_f32 {vr(c+i,2)}, {vr(CC+4*(nt-nz)+i,2)}, {r}, {vr(c+i,2)} op_sel:[0,1,0]')
            gelu4(k, c, T)
            k(f'v_cvt_pk_bf16_f32 v{c}, v{c}, v{c+1}\nv_cvt_pk_bf16_f32 v{c+1}, v{c+2}, v{c+3}')
            k(f'ds_write_b64 v14, {vr(c,2)} offset:{(mt*7 + nt - nz + 3*wc)*512}')
    k.stamp(13); z1(0); z1(1); k.arrive(3); z1(2)
    k.spin(28, 1, 6); k.stamp(14)
    k(f'''v_lshlrev_b32 v7, 3, v0
    buffer_load_dwordx2 v[8:9], v7, s[44:47], s38 offen sc1
    s_lshl_b32 s7, s3, 9
    s_add_u32 s7, s7, {TB+2048}
    v_lshl_add_u32 v6, v0, 2, s7
    v_lshl_add_u32 v4, v2, 4, s7''')
    g.pkaddr(12)
    k(f'''    s_lshl_b32 s39, s5, 6
    s_lshl_b32 s7, s4, 2
    s_add_u32 s39, s39, s7
    s_lshl_b32 s7, s30, 1
    s_add_u32 s39, s39, s7
    s_mul_i32 s39, s39, 7168
    s_add_u32 s39, s39, {4096*wc}''')
    z1(3)
    k('s_waitcnt vmcnt(0)'); rstats(k, 8, 9, '0x3a124925')
    k('ds_write_b32 v6, v8\nds_write_b32 v6, v9 offset:256\ns_waitcnt lgkmcnt(0)')
    rd_rn(256); k('s_waitcnt lgkmcnt(0)')
    n = 0
    for i in range(2):
        for nt in Z:
            for mt in (2*i, 2*i+1):
                c = g.acc(mt, nt)
                for j in (0, 2): k(f'v_pk_fma_f32 {vr(c+j,2)}, {vr(c+j,2)}, {vr(R4+4*mt+j,2)}, {vr(N4+4*mt+j,2)}')
            d = PQ + 4*n; n += 1
            g.pack_pair(g.acc(2*i, nt), g.acc(2*i+1, nt), d)
            k(f'buffer_store_dwordx4 {vr(d,4)}, v12, s[16:19], s39 offen offset:{nt*1024} sc1')
        k('s_add_u32 s39, s39, 7168')
    k.stamp(15); k.arrive(4)

def win_pre(k):
    def pre(ph):
        if ph == 0:
            k.srd(44, S_WS, ST, 32768); k.srd(40, S_WS, CS2, 16*16*896)
            k(f'''s_lshl_b32 s6, s29, 6
            v_add_u32 v24, s6, v0
            v_and_b32 v25, 127, v24
            v_lshlrev_b32 v23, 3, v25
            s_lshl_b32 s6, s4, 10
            buffer_load_dwordx2 v[26:27], v23, s[44:47], s6 offen sc1
            v_min_u32 v22, 223, v24
            v_lshlrev_b32 v22, 2, v22
            s_mul_i32 s6, s5, 896''')
            for i in range(16): k(f'buffer_load_dword v{28+i}, v22, s[40:43], s6 offen sc1\ns_add_u32 s6, s6, 14336')
        else:
            rstats(k, 26, 27, '0x3a800000')
            for i in range(1, 16): k(f'v_add_f32 v28, v28, v{28+i}')
            k(f'''s_mov_b32 s6, {TB}
            v_lshl_add_u32 v25, v25, 2, s6
            v_lshl_add_u32 v24, v24, 2, s6
            ds_write_b32 v25, v26
            ds_write_b32 v25, v27 offset:512
            ds_write_b32 v24, v28 offset:1024
            s_waitcnt lgkmcnt(0)''')
    return pre

def sp_compute(g):
    k = g.k; ZR = g.FREE; BB = ZR + 28
    k.srd(40, S_WS, U_, 2048*3584); k.srd(44, S_BSP, 0, 4096)
    k(f's_lshl_b32 s38, s4, 3\ns_lshl_b32 s7, s3, 1\ns_add_u32 s38, s38, s7\ns_lshl_b32 s7, s38, 5\nv_lshlrev_b32 v15, 1, v1')
    for mt in range(2): k(f'buffer_load_ushort v{BB+2*mt}, v15, s[44:47], s7 offen offset:{32*mt}')
    g.csetup(); g.mainloop(16)
    k(f's_mul_i32 s6, s3, 7168\ns_add_u32 s6, s6, {ZS}\nv_lshl_add_u32 v6, v0, 3, s6')
    for i in range(14): k(f'ds_read_b64 {vr(ZR+2*i,2)}, v6 offset:{512*i}')
    g.pkaddr(4)
    k(f'''v_and_b32 v5, 1, v2
    v_lshrrev_b32 v3, 1, v2
    v_lshl_add_u32 v5, v5, 2, v3
    v_lshl_add_u32 v5, v5, 4, v1
    v_lshlrev_b32 v5, 4, v5
    s_mul_i32 s6, s4, {128*3584}
    s_lshr_b32 s7, s5, 1
    s_mul_i32 s7, s7, {7*8192}
    s_add_u32 s6, s6, s7
    s_lshl_b32 s7, s3, 11
    s_add_u32 s6, s6, s7
    s_waitcnt vmcnt(0) lgkmcnt(0)
    v_lshlrev_b32 v{BB}, 16, v{BB}
    v_lshlrev_b32 v{BB+2}, 16, v{BB+2}
    s_bitcmp1_b32 s5, 0
    s_cbranch_scc1 {g.lab('odd')}''')
    T = g.FX
    def prep(mt, nt):
        c = g.acc(mt, nt)
        unpack(k, ZR+14*mt+2*nt, 2, T)
        for i in (0, 2): k(f'v_pk_add_f32 {vr(c+i,2)}, {vr(c+i,2)}, {vr(BB+2*mt,2)} op_sel_hi:[1,0]')
        for i in (0, 2): k(f'v_pk_mul_f32 {vr(c+i,2)}, {vr(c+i,2)}, {vr(T+i,2)}')
        return c
    for odd in range(2):
        d = T + 4
        for i in range(3):
            k(f's_add_u32 s7, s6, {(4*odd+i)*8192}')
            for mt in range(2):
                g.pack_pair(prep(mt, 2*i+odd), prep(mt, 2*i+odd+1), d)
                k(f'buffer_store_dwordx4 {vr(d,4)}, v4, s[40:43], s7 offen offset:{1024*mt} sc1'); d += 4
        g.pack_pair(prep(0, 6-6*odd), prep(1, 6-6*odd), d)
        k(f's_add_u32 s7, s6, {3*8192}\nbuffer_store_dwordx4 {vr(d,4)}, v5, s[40:43], s7 offen offset:{512*odd} sc1')
        k(f's_branch {g.lab("ex")}\n{g.lab("odd")}:' if odd == 0 else f'{g.lab("ex")}:')
    k.stamp(26); k.arrive(5)

def k_mega():
    k = K('sequential_preLN__sliding_block__mixer_gmlp__prompt', 256, 512, 163840, 256); o = OPT
    Q = Gemm(k, 'q', 192, 1024, 2048, 6144, 2, 2, o.get('qNS', 4), 'tr', 128, ((0, 0), (4, 1984), (8, 3968), (12, -128), (16, 1856), (20, 3840)))
    C = Gemm(k, 'c', 64, 1024, 2048, 2048, 4, 1, 6, 'tr', afrag=True)
    D = Gemm(k, 'd', 224, 1024, 2048, 0, 2, 2, 3, 'frag', afrag=True)
    DT = Gemm(k, 'dt', 224, 1024, 2048, 7168, 2, 2, 3, 'tr', 224, ((0, 3584), (8, -128), (14, 3488), (20, -224)), True)
    E = Gemm(k, 'e', 112, 2048, 4096, 0, 4, 1, 4, 'frag')
    F = Gemm(k, 'f', 64, 1792, 3584, 2048, 4, 1, 6, 'tr', afrag=True)
    xr = o.get('xr', 4); lx = xr.bit_length()-1; nxc = 16//(32//xr); lc = nxc.bit_length()-1
    k(f'''s_cmp_ge_u32 s2, 256
    s_cbranch_scc1 {k.lab('end')}
    s_load_dwordx16 s[64:79], s[0:1], 0
    s_load_dwordx4 s[80:83], s[0:1], 64
    s_load_dwordx2 s[84:85], s[0:1], 80
    v_lshrrev_b32 v1, 6, v0
    v_and_b32 v0, 63, v0
    v_readfirstlane_b32 s3, v1
    s_and_b32 s6, s2, 7
    s_lshr_b32 s7, s2, 3
    s_lshr_b32 s4, s6, {lc}
    s_lshl_b32 s4, s4, {lx}
    s_and_b32 s28, s7, {xr-1}
    s_add_u32 s4, s4, s28
    s_and_b32 s5, s6, {nxc-1}
    s_mul_i32 s5, s5, {32//xr}
    s_lshr_b32 s28, s7, {lx}
    s_add_u32 s5, s5, s28
    v_and_b32 v1, 15, v0
    v_lshrrev_b32 v2, 4, v0
    s_mov_b32 s37, 1000000
    v_mov_b32 v254, {SY}
    s_sub_u32 s29, s3, 4
    s_waitcnt lgkmcnt(0)''')
    k.srd(60, S_WS, FL, 65536)
    k(f's_cmp_lt_u32 s3, 4\ns_cbranch_scc1 {k.lab("cq")}')
    k.stamp(0)
    def qtail():
        lb = k.uid('dbg')
        k.srd(44, S_WS, LS, 16384); k.srd(40, S_WS, CS, 16*16*768)
        k(f'''s_lshl_b32 s7, s4, 7
        s_add_u32 s7, s7, s5
        s_lshl_b32 s7, s7, 2
        s_add_u32 s7, s7, {7*8192}
        {lb}:
        buffer_load_dword v16, off, s[60:63], s7 sc1
        s_sub_u32 s37, s37, 1
        s_cselect_b32 s37, 0, s37
        s_cbranch_scc1 {lb}x
        s_waitcnt vmcnt(0)
        v_readfirstlane_b32 s6, v16
        s_cmp_lg_u32 s6, 1
        s_cbranch_scc1 {lb}
        {lb}x:
        s_lshl_b32 s6, s29, 6
        v_add_u32 v24, s6, v0
        v_and_b32 v25, 127, v24
        v_lshlrev_b32 v23, 3, v25
        s_lshl_b32 s6, s4, 10
        buffer_load_dwordx2 v[26:27], v23, s[44:47], s6 offen sc1
        v_min_u32 v22, 191, v24
        v_lshlrev_b32 v22, 2, v22
        s_mul_i32 s6, s5, 768''')
        for i in range(16): k(f'buffer_load_dword v{28+i}, v22, s[40:43], s6 offen sc1\ns_add_u32 s6, s6, {16*768}')
        return 17
    Q.loader(S_X, 0, S_WQKV, 0, 1024*6144, tail=qtail, pf=((S_WO, 0, 2*MB),))
    k('v_lshl_add_u32 v3, v1, 2, v254\nv_mov_b32 v4, 0\nds_write_b32 v3, v4\ns_waitcnt vmcnt(1)')
    for i in range(1, 16): k(f'v_add_f32 v28, v28, v{28+i}')
    k(f'''s_mov_b32 s6, {TB}
    v_lshl_add_u32 v25, v25, 2, s6
    v_lshl_add_u32 v24, v24, 2, s6
    ds_write_b32 v25, v26
    ds_write_b32 v25, v27 offset:512
    ds_write_b32 v24, v28 offset:1024
    s_mul_i32 s33, s4, {64*7168}
    s_lshl_b32 s32, s29, 10
    s_lshl_b32 s6, s2, 2
    s_add_u32 s6, s6, s29
    s_lshl_b32 s6, s6, 11
    v_lshlrev_b32 v4, 5, v0
    s_waitcnt lgkmcnt(0)
    s_barrier''')
    DT.woffs(WO); k(f's_mul_i32 s6, s5, 224'); k.srd(44, S_WIN, 0, 1024*7168, 6); k('s_sub_u32 s46, s46, s6')
    k(f's_branch {k.lab("attn")}\n{k.lab("cq")}:')
    k.stamp(0)
    F0 = Q.FX; W0, X0, A8 = 192, 224, 240
    Q.csetup()
    k.srd(8, S_WQKV, 0, 1024*6144); k.srd(12, S_WS, CS, 16*16*768); k.srd(20, S_X, 0, 4*MB); k.srd(24, S_WS, ST, 114688)
    k(f'''s_lshl_b32 s28, s4, 4
    s_add_u32 s28, s28, s5
    s_lshl_b32 s6, s28, 2
    s_add_u32 s41, s6, s3
    s_lshl_b32 s6, s41, 12
    v_lshlrev_b32 v10, 4, v0''')
    for i in range(4): k(f'buffer_load_dwordx4 {vr(X0+4*i,4)}, v10, s[20:23], s6 offen offset:{1024*i}')
    k(f'''s_lshl_b32 s41, s41, 4
    s_add_u32 s41, s41, {LS-ST}
    s_mul_i32 s40, s28, 768
    s_lshl_b32 s7, s3, 8
    s_add_u32 s40, s40, s7
    s_cmp_eq_u32 s3, 3
    s_cbranch_scc1 L_xs
    v_lshrrev_b32 v10, 3, v0
    v_and_b32 v11, 7, v0
    v_lshlrev_b32 v11, 4, v11
    s_mov_b32 s6, 6144
    v_mad_u32_u24 v10, v10, s6, v11
    s_mul_i32 s6, s4, {64*6144}
    s_lshl_b32 s7, s3, 11
    s_add_u32 s6, s6, s7
    s_lshl_b32 s7, s5, 7
    s_add_u32 s6, s6, s7''')
    for i in range(8): k(f'buffer_load_dwordx4 {vr(W0+4*i,4)}, v10, s[8:11], s6 offen\ns_add_u32 s6, s6, {8*6144}')
    k(f'''s_branch L_qm
    L_xs:
    s_lshl_b32 s28, s28, 6
    v_lshlrev_b32 v10, 14, v2
    v_lshl_add_u32 v10, v1, 2, v10
    v_lshlrev_b32 v11, 13, v0
    s_lshl_b32 s6, s4, 9
    s_lshl_b32 s7, s5, 2
    s_add_u32 s6, s6, s7
    s_mov_b32 exec_hi, 0
    buffer_store_dword v16, v10, s[24:27], s28 offen sc1
    s_mov_b64 exec, 0xff
    buffer_store_dword v16, v11, s[60:63], s6 offen sc1
    s_mov_b64 exec, -1
    L_qm:
    v_mov_b32 v15, 1
    s_cmp_eq_u32 s3, 0
    s_cselect_b32 s39, {Q.nk-o.get('pi', 0)-3}, -1''')
    p = K('tmp', 0, 0, 0, 0)
    p(f's_mov_b32 s6, 0x3f803f80\ns_waitcnt vmcnt(0)')
    for j in range(16):
        for q in range(2):
            a = A8 + 2*(j//8) + q; x = f'v{X0+j}'
            p(f'v_dot2_f32_bf16 v{a}, {x}, {x if q else "s6"}, {f"v{a}" if j % 8 else 0}')
    p('s_nop 2')
    def allsum(n, T, rors):
        for r in rors:
            for j in range(n): p(f'v_add_f32_dpp v{A8+j}, v{A8+j}, v{A8+j} row_ror:{r} row_mask:0xf bank_mask:0xf')
        for q in (16, 32):
            for j in range(n): p(f'v_mov_b32 v{T+j}, v{A8+j}')
            for j in range(n): p(f'v_permlane{q}_swap_b32 v{T+j}, v{A8+j}')
            for j in range(n): p(f'v_add_f32 v{A8+j}, v{A8+j}, v{T+j}')
    allsum(4, A8+4, (8, 4, 2, 1))
    rstats(p, A8, A8+1, '0x3a800000'); rstats(p, A8+2, A8+3, '0x3a800000')
    p(f's_mov_b64 exec, 1\nbuffer_store_dwordx4 {vr(A8,4)}, off, s[24:27], s41 sc1\ns_mov_b64 exec, -1\ns_cmp_eq_u32 s3, 3\ns_cbranch_scc1 L_np')
    for i in range(8):
        unpack(p, W0+4*i, 4, X0 if i else A8)
        if i:
            for j in range(4): p(f'v_pk_add_f32 {vr(A8+2*j,2)}, {vr(A8+2*j,2)}, {vr(X0+2*j,2)}')
    allsum(8, X0, (8,))
    p(f'''v_lshlrev_b32 v10, 5, v0
    s_mov_b64 exec, 0xff
    buffer_store_dwordx4 {vr(A8,4)}, v10, s[12:15], s40 offen sc1
    buffer_store_dwordx4 {vr(A8+4,4)}, v10, s[12:15], s40 offen offset:16 sc1
    s_mov_b64 exec, -1
    L_np:''')
    k.srd(52, 82, 0, 256); k.srd(16, S_WS, QKV, 12*MB); k.srd(44, S_WIN, 0, 64); k('s_mov_b32 s33, 0')
    k(f'v_lshlrev_b32 v13, 9, v2\nv_lshl_add_u32 v13, v1, 2, v13\nv_mov_b32 v14, 1\ns_sub_u32 s38, s39, 2\ns_mov_b32 s50, {7*8192}\ns_mov_b32 s51, {7*8192+4096}')
    k('\n'.join(p.L))
    Q.mainloop(1, extra=[f's_cmp_lg_u32 s36, {Q.nk-o.get("pi", 0)-2}\ns_cbranch_scc1 L_nw\ns_waitcnt vmcnt(0)\nL_nw:',
        's_cmp_lg_u32 s36, s39\ns_cbranch_scc1 L_na\ns_mov_b64 exec, 1\nbuffer_atomic_add v15, off, s[52:55], 0 sc0\ns_mov_b64 exec, -1\nL_na:',
        's_cmp_lg_u32 s36, s38\ns_cbranch_scc1 L_nb\ns_waitcnt vmcnt(0)\nv_readfirstlane_b32 s6, v15\ns_and_b32 s6, s6, 255\ns_cmp_lg_u32 s6, 255\ns_cbranch_scc1 L_nb\n'
        + ''.join(f'buffer_store_dword v14, v13, s[60:63], s{50+i//2} offen offset:{2048*(i%2)} sc1\n' for i in range(4)) + 'L_nb:'])
    RR, CC = F0+48, F0+56
    k(f'''s_barrier
    s_lshl_b32 s6, s30, 8
    s_add_u32 s6, s6, {TB}
    v_lshl_add_u32 v6, v1, 2, s6
    s_lshl_b32 s6, s31, 7
    s_add_u32 s6, s6, {TB+1024}
    v_lshl_add_u32 v7, v2, 4, s6''')
    for mt in range(4): k(f'ds_read_b32 v{RR+2*mt}, v6 offset:{64*mt}\nds_read_b32 v{RR+2*mt+1}, v6 offset:{512+64*mt}')
    for nt in range(6): k(f'ds_read_b128 {vr(CC+4*nt,4)}, v7 offset:{256*(nt//2)+64*(nt%2)}')
    k.stamp(23); Q.pg16(4)
    k(f'''v_lshl_add_u32 v4, v1, 6, v4
    s_lshl_b32 s6, s5, 1
    s_add_u32 s6, s6, s31
    s_lshl_b32 s6, s6, 17
    s_lshl_b32 s7, s4, 13
    s_add_u32 s6, s6, s7
    s_lshl_b32 s7, s30, 12
    s_add_u32 s6, s6, s7
    s_lshl_b32 s28, s31, 13
    s_add_u32 s7, s7, s28
    s_add_u32 s7, s7, {QS}
    v_add_u32 v5, s7, v4
    s_waitcnt lgkmcnt(0)''')
    n = 0
    for p in (1, 2, 0):
        k(f's_add_u32 s6, s6, {32*131072}')
        for mt in range(4):
            d = Q.FX + 4*n; n += 1; c = Q.acc(mt, 2*p); r = vr(RR+2*mt, 2)
            for i in range(0, 8, 2): k(f'v_pk_mul_f32 {vr(c+i,2)}, {vr(c+i,2)}, {r} op_sel_hi:[1,0]')
            for i in range(0, 8, 2): k(f'v_pk_fma_f32 {vr(c+i,2)}, {vr(CC+8*p+i,2)}, {r}, {vr(c+i,2)} op_sel:[0,1,0]')
            Q.pack_pair(Q.acc(mt, 2*p), Q.acc(mt, 2*p+1), d)
            k(f'buffer_store_dwordx4 {vr(d,4)}, v4, s[16:19], s6 offen offset:{mt*1024} sc1' if p else f'ds_write_b128 v5, {vr(d,4)} offset:{mt*1024}')
    k.stamp(24); k.arrive(0); k.stamp(25)
    k(f'{k.lab("attn")}:')
    attn(k)
    k(f's_cmp_lt_u32 s3, 4\ns_cbranch_scc1 {k.lab("cc")}')
    C.loader(S_WS, O_, S_WO, 0, 2*MB, lambda: k.sync([(1, 4, 5, 8)], 16), st=7, pf=PF('C'), pub=(6, 5, 4))
    D.loader(S_WS, H_, S_WS, WP, 0, lambda: k.sync([(2, 4, 5, 4)], 16), pre=win_pre(k), st=10, pf=[(S_WSP, (4096, 4, 128*4096, 32*4096, 128, 3), 8*MB)][:'D' in o.get('own', '')] + PF('D'), dep0=lambda: k.sync([(6, 5, 4, 0)], 16))
    E.loader(S_WSP, 0, S_WS, Z2, 0, lambda: k.sync([(3, 4, 5, 4), (4, 5, 4, 4)], 16), depA=False, st=16, pf=[(S_WOUT, (2048, 5, 128, 32*2048, 128*2048, 3), 1792*2048)][:'E' in o.get('own', '')] + PF('E'))
    F.loader(S_WS, U_, S_WOUT, 0, 1792*2048, lambda: k.sync([(5, 4, 5, 4)], 16), st=19)
    k.stamp_out(); k(f's_endpgm\n{k.lab("cc")}:')
    res_compute(C, 7, S_X, 0, S_WS, H_, repack(k))
    k.srd(16, S_WS, Z2, 8*MB)
    D.csetup()
    k(f's_mov_b32 s48, 0xbdd2d3e8\ns_mov_b32 s49, s48\ns_cmp_eq_u32 s31, 1\ns_cbranch_scc1 {k.lab("d1")}')
    win_compute(D, 0); k(f's_branch {k.lab("ce")}\n{k.lab("d1")}:'); win_compute(D, 1)
    k(f'{k.lab("ce")}:')
    sp_compute(E)
    res_compute(F, 19, S_WS, H_, S_OUT, 0, False)
    if o.get('ts'): k('s_waitcnt vmcnt(0)'); k.stamp(22)
    k.stamp_out(); k(f'{k.lab("end")}:\ns_endpgm')
    return k
```

```python
MB = 1 << 20
XN, QKV, O_, H_, Z1, Z2, U_, CS, ST = 0, 4*MB, 16*MB, 20*MB, 24*MB, 32*MB, 40*MB, 56*MB, 57*MB
FL = ST + 32768; LS = ST + 98304; CS2 = CS + 524288; WP = Z1
S_X, S_WQKV, S_WO, S_WIN, S_WSP, S_BSP, S_WOUT, S_OUT, S_WS = 64, 66, 68, 72, 74, 76, 78, 80, 84
P_X, P_WQKV, P_WO, P_WIN, P_WSP, P_BSP, P_WOUT, P_OUT, P_DBG, P_WS = 0, 8, 16, 32, 40, 48, 56, 64, 72, 80

OPT = {}
class K:
    def __init__(s, name, grid, block, lds, vgpr):
        s.name, s.grid, s.block, s.lds, s.vgpr = name, grid, block, lds, vgpr
        s.L = []
    def __call__(s, txt):
        for l in txt.strip('\n').split('\n'):
            l = l.strip()
            if l: s.L.append(l if l.endswith(':') else '    ' + l)
    def lab(s, x): return f'L_{x}'
    def ptr(s, sreg, slot): s(f's_load_dwordx2 s[{sreg}:{sreg+1}], s[0:1], {slot}')
    def srd(s, d, p, off, size, soff=None):
        s(f's_add_u32 s{d}, s{p}, {off}\ns_addc_u32 s{d+1}, s{p+1}, 0')
        if soff is not None: s(f's_add_u32 s{d}, s{d}, s{soff}\ns_addc_u32 s{d+1}, s{d+1}, 0')
        s(f's_mov_b32 s{d+2}, {size}\ns_mov_b32 s{d+3}, 0x20000')
    def stamp(s, i):
        if OPT.get('ts'): s(f's_memtime s[88:89]\ns_memrealtime s[90:91]\ns_waitcnt lgkmcnt(0)\nv_writelane_b32 v255, s88, {2*i}\nv_writelane_b32 v255, s90, {2*i+1}')
    def stamp_out(s):
        if not OPT.get('ts'): return
        s.srd(88, 84, 60*MB, MB)
        s('s_lshl_b32 s92, s2, 3\ns_add_u32 s92, s92, s3\ns_lshl_b32 s92, s92, 8\nv_lshlrev_b32 v1, 2, v0\nbuffer_store_dword v255, v1, s[88:91], s92 offen')
    def prefetch(s, p, off, sz, nwv=4, wv=29):
        if off in ('col', 'row'):
            sh = 11 if off == 'col' else 10; r = (sz if off == 'col' else sz // 4 ) // 128 >> sh; s.srd(96, p, 0, sz)
            s(f's_and_b32 s6, s5, 7\ns_lshl_b32 s6, s6, 2\ns_and_b32 s7, s4, 3\ns_add_u32 s6, s6, s7\ns_lshl_b32 s6, s6, 2\ns_add_u32 s6, s6, s{wv}\ns_mul_i32 s6, s6, {r << sh}')
            s('s_and_b32 s7, s5, 8\ns_lshl_b32 s7, s7, 7' if off == 'col' else f's_and_b32 s7, s4, 12\ns_mul_i32 s7, s7, {sz//16}')
            s(f's_add_u32 s6, s6, s7\nv_lshrrev_b32 v252, 1, v0\nv_lshlrev_b32 v252, {sh}, v252\nv_and_b32 v251, 1, v0\nv_lshl_add_u32 v252, v251, 6, v252')
            s(f's_bfm_b64 exec, {2*r}, 0\nbuffer_load_dword v253, v252, s[96:99], s6 offen offset:384\ns_mov_b64 exec, -1')
            return 1
        if isinstance(off, tuple):
            ld, sr, sm, wm, step, n = off
            s.srd(96, p, 0, sz)
            s(f's_mul_i32 s6, s{sr}, {sm}\ns_mul_i32 s7, s{wv}, {wm}\ns_add_u32 s6, s6, s7\nv_lshrrev_b32 v252, 1, v0\nv_mul_u32_u24 v252, {ld}, v252\nv_and_b32 v251, 1, v0\nv_lshl_add_u32 v252, v251, 6, v252')
            for i in range(n): s(f'buffer_load_dword v253, v252, s[96:99], s6 offen\ns_add_u32 s6, s6, {step}')
            return n
        per = sz // (256*nwv); n = -(-per // 4096); st = per // n // 64
        s.srd(96, p, off, sz)
        s(f's_mul_i32 s6, s2, {nwv}\ns_add_u32 s6, s6, s{wv}\ns_mul_i32 s6, s6, {per}\nv_mul_u32_u24 v252, {st}, v0')
        for i in range(n): s(f'buffer_load_dword v253, v252, s[96:99], s6 offen offset:{i*st*64}')
        return n
    def uid(s, x): OPT['n'] = OPT.get('n', 0) + 1; return s.lab(f'{x}{OPT["n"]}')
    def arrive(s, ph):
        s(f'v_mov_b32 v3, 1\ns_waitcnt vmcnt(0)\ns_mov_b64 exec, 1\nds_add_u32 v254, v3 offset:{8*ph}\ns_mov_b64 exec, -1')
    def spin(s, off, val, t):
        lb = s.uid('spin')
        s(f'''{lb}:
        ds_read_b32 v{t}, v254 offset:{off}
        s_sub_u32 s37, s37, 1
        s_cselect_b32 s37, 0, s37
        s_cbranch_scc1 {lb}x
        s_waitcnt lgkmcnt(0)
        v_readfirstlane_b32 s6, v{t}
        s_cmp_ge_u32 s6, {val}
        s_cbranch_scc1 {lb}x
        s_sleep 1
        s_branch {lb}
        {lb}x:
        s_waitcnt lgkmcnt(0)''')
    def publish(s, ph, grp, mem):
        o = s.uid('pub')
        s(f's_cmp_lg_u32 s3, 4\ns_cbranch_scc1 {o}\ns_lshl_b32 s6, s{grp}, 7\ns_add_u32 s6, s6, s{mem}\ns_lshl_b32 s6, s6, 2\ns_add_u32 s6, s6, {ph*8192}\nv_mov_b32 v3, 1\ns_mov_b64 exec, 1\nbuffer_store_dword v3, off, s[60:63], s6 sc1\ns_mov_b64 exec, -1\n{o}:')
    def sync(s, steps, t, mask=None, mid=None):
        o = s.uid('oth')
        s(f's_cmp_lg_u32 s3, 4\ns_cbranch_scc1 {o}\nv_and_b32 v{t+1}, 15, v0\nv_lshlrev_b32 v{t+1}, 2, v{t+1}')
        for ph, grp, mem, n in steps:
            lb = s.uid('poll')
            if n: s.spin(8*ph, n, t); s.publish(ph, grp, mem)
            if mid and ph == steps[-1][0]: s(f's_mov_b64 exec, 1\nds_add_u32 v254, v3 offset:{8*ph}\ns_mov_b64 exec, -1'); mid()
            s(f's_lshl_b32 s6, s{grp}, 9\ns_add_u32 s6, s6, {ph*8192}\n{lb}:\nbuffer_load_dword v{t}, v{t+1}, s[60:63], s6 offen sc1')
            s(f's_sub_u32 s37, s37, 1\ns_cselect_b32 s37, 0, s37\ns_cbranch_scc1 {lb}x\ns_waitcnt vmcnt(0)\nv_cmp_eq_u32 vcc, 1, v{t}')
            if mask: s(f's_or_b64 vcc, vcc, {mask}')
            s(f's_cmp_eq_u64 vcc, -1\ns_cbranch_scc1 {lb}x\ns_sleep {OPT.get("slp", 1)}\ns_branch {lb}\n{lb}x:\nds_write_b32 v254, v254 offset:{8*ph+4}')
        s(f's_branch {o}x\n{o}:')
        if mid: s.spin(8*steps[-1][0], steps[-1][3]+1, t); mid()
        s.spin(8*steps[-1][0]+4, 1, t)
        s(f'{o}x:')
    def text(s):
        n = s.name + '_kernel'
        return f'.globl {n}\n.p2align 8\n.type {n},@function\n{n}:\n' + '\n'.join(s.L) + '\n'
    def desc(s):
        return f'''.p2align 6
.amdhsa_kernel {s.name}_kernel
  .amdhsa_next_free_vgpr {s.vgpr}
  .amdhsa_next_free_sgpr 102
  .amdhsa_accum_offset {(s.vgpr+3)//4*4}
  .amdhsa_group_segment_fixed_size 0
  .amdhsa_kernarg_size 88
  .amdhsa_user_sgpr_count 2
  .amdhsa_user_sgpr_kernarg_segment_ptr 1
  .amdhsa_system_sgpr_workgroup_id_x 1
.end_amdhsa_kernel
'''
    def launch(s): return f'; @launch kernel={s.name}_kernel grid=({s.grid},1,1) block=({s.block},1,1) lds={s.lds}\n'

def vr(a, n=1): return f'v{a}' if n == 1 else f'v[{a}:{a+n-1}]'

class Gemm:
    def __init__(g, k, name, BN, Kd, lda, ldw, WR, WC, NS, wmode, tncol=None, segs=(), afrag=False):
        g.afrag = afrag
        g.BN, g.Kd, g.lda, g.ldw, g.WR, g.WC, g.NS, g.wmode = BN, Kd, lda, ldw, WR, WC, NS, wmode
        g.MT = 8//WR; g.NT = BN//16//WC; g.nk = Kd//64; g.tncol = tncol or BN*2; g.segs = segs
        g.STG = 16384 + BN*128; g.XL = g.STG*NS; g.k = k; g.name = name
        assert g.XL <= 163840
        g.ACC = 16; g.FX = g.ACC + g.MT*g.NT*4; g.FS = (g.MT+g.NT)*4; g.FY = g.FX + g.FS; g.FREE = g.FY + g.FS
    def lab(g, x): return g.k.lab(g.name + x)
    def acc(g, mt, nt): return g.ACC + (mt*g.NT + nt)*4
    def woffs(g, dst=range(8, 16)):
        k = g.k; BN = g.BN
        npw = BN//8; nw = (npw+3)//4
        for i in range(nw):
            d = dst[i]
            k(f's_lshl_b32 s6, s29, 6\ns_add_u32 s6, s6, {256*i}\nv_add_u32 v3, s6, v0')
            if g.wmode == 'frag': k(f'v_lshlrev_b32 v{d}, 4, v3'); continue
            c = BN//8; M = (65536+c-1)//c
            assert all((q*M) >> 16 == q//c for q in range(64*c))
            k(f'''s_mov_b32 s6, {M}
            v_mul_u32_u24 v20, s6, v3
            v_lshrrev_b32 v20, 16, v20
            v_mul_u32_u24 v21, {c}, v20
            v_sub_u32 v21, v3, v21
            v_bfe_u32 v22, v20, 3, 1''')
            if BN != 224: k('v_bfe_u32 v23, v20, 1, 1\nv_lshl_add_u32 v22, v22, 1, v23')
            k(f'v_lshlrev_b32 v22, 1, v22\nv_xor_b32 v21, v21, v22')
            k(f'v_mov_b32 v22, {g.segs[0][1] if g.segs else 0}')
            for th, dl in g.segs[1:]: k(f'v_cmp_le_u32 vcc, {th}, v21\nv_mov_b32 v23, {dl}\ns_nop 0\nv_cndmask_b32 v22, v22, v23, vcc')
            k(f'''v_lshl_add_u32 v21, v21, 4, v22
            s_mov_b32 s6, {g.ldw}
            v_mad_u32_u24 v{d}, v20, s6, v21''')
    def loader(g, pa, offa, pw, offw, szw, dep=None, depA=True, pre=None, st=None, tail=None, dep0=None, pf=(), pub=None, lpf=()):
        k = g.k; NS = g.NS; BN = g.BN
        k(f's_mul_i32 s6, s4, {128*g.lda}')
        k.srd(8, pa, offa, 128*g.lda, 6)
        if g.wmode == 'tr':
            k(f's_mul_i32 s6, s5, {g.tncol}'); k.srd(12, pw, offw, szw, 6); k(f's_sub_u32 s14, s14, s6')
        else:
            k(f's_mul_i32 s6, s5, {g.nk*BN*128}'); k.srd(12, pw, offw, g.nk*BN*128, 6)
        k(f'''v_lshrrev_b32 v3, 3, v0
        s_lshl_b32 s6, s29, 3
        v_add_u32 v3, s6, v3
        v_lshrrev_b32 v4, 1, v3
        v_xor_b32 v4, v4, v0
        v_and_b32 v4, 7, v4
        v_lshlrev_b32 v4, 4, v4
        s_mov_b32 s6, {g.lda}
        v_mad_u32_u24 v4, v3, s6, v4''')
        if g.afrag: k('s_lshl_b32 s6, s29, 10\nv_lshl_add_u32 v4, v0, 4, s6')
        for i in range(1, 4): k(f'v_add_u32 v{4+i}, {4096*i if g.afrag else 32*g.lda*i}, v4')
        npw = BN//8; nw = (npw+3)//4; g.woffs()
        wstep = 64*g.ldw if g.wmode == 'tr' else BN*128
        k(f's_lshl_b32 s32, s29, 10\ns_mov_b32 s33, 0\ns_mov_b32 s34, 0\ns_add_u32 s35, s32, {g.XL}')
        rot = OPT.get('rot', {}).get(g.name); astep = 16384 if g.afrag else 128
        if rot: k(f's_mul_i32 s6, s{rot[0]}, {rot[1]}\ns_and_b32 s6, s6, 15\ns_mul_i32 s33, s6, {astep}\ns_mul_i32 s34, s6, {wstep}')
        sa, sw = (' sc1' if dep and depA else ''), (' sc1' if dep0 or (dep and not depA) else '')
        if dep0: dep0()
        def isA(o):
            for i in range(4): k(f's_add_u32 m0, s32, {o+4096*i}\ns_nop 0\nbuffer_load_dwordx4 v{4+i}, s[8:11], s33 offen{sa} lds')
            k(f's_add_u32 s33, s33, {astep}')
            if rot: k(f's_cmp_eq_u32 s33, {astep*g.nk}\ns_cselect_b32 s33, 0, s33')
        def isW(o, n):
            for i in range(n): k(f's_add_u32 m0, s32, {o+16384+4096*i}\ns_nop 0\nbuffer_load_dwordx4 v{8+i}, s[12:15], s34 offen{sw} lds')
            k(f's_add_u32 s34, s34, {wstep}')
            if rot: k(f's_cmp_eq_u32 s34, {wstep*g.nk}\ns_cselect_b32 s34, 0, s34')
        def issue(n):
            isA(0); isW(0, n)
            k(f's_add_u32 s32, s32, {g.STG}\ns_cmp_ge_u32 s32, s35\ns_cselect_b32 s6, {g.XL}, 0\ns_sub_u32 s32, s32, s6')
        variants = [(nw, 'a')]
        if npw % 4:
            k(f's_cmp_ge_u32 s29, {npw % 4}\ns_cbranch_scc1 {g.lab("ldb")}')
            variants.append((nw-1, 'b'))
        for n, t in variants:
            P = 4+n; nd = P
            k(f'{g.lab("ld"+t)}:')
            if dep:
                nd = 4 if depA else n
                def first():
                    if g.name in OPT.get('col', 'cfeQ'): k.prefetch(pw, 'col', szw) if depA else k.prefetch(pa, 'row', 2048*g.lda)
                    for s in range(NS-1): isW(s*g.STG, n) if depA else isA(s*g.STG)
                    for x in lpf: k.prefetch(*x)
                if g.name in OPT.get('late', 'cef'): dep(first)
                else: first(); dep(None)
                if st: k.stamp(st)
                if pre: pre(0)
                for s in range(NS-1): isA(s*g.STG) if depA else isW(s*g.STG, n)
            else:
                for s in range(NS-1): isA(s*g.STG); isW(s*g.STG, n)
            k(f's_add_u32 s32, s32, {g.STG*(NS-1)}')
            if pre: k(f's_waitcnt vmcnt({nd*(NS-1)})'); pre(1)
            for s in range(NS-2): k(f's_waitcnt vmcnt({nd*(NS-2-s)+P*s})\ns_barrier'); issue(n)
            k(f's_mov_b32 s36, {g.nk-2*NS+3}\n{g.lab("lp"+t)}:')
            k(f's_waitcnt vmcnt({P*(NS-2)})\ns_barrier'); issue(n)
            k(f's_sub_u32 s36, s36, 1\ns_cmp_lg_u32 s36, 0\ns_cbranch_scc1 {g.lab("lp"+t)}')
            xo = 0 if tail else sum(k.prefetch(*x) for x in pf)
            if pub: k.publish(*pub)
            for s in range(NS-2, -1, -1):
                k(f's_waitcnt vmcnt({P*s + xo})\ns_barrier')
                if tail and s == OPT.get('tl', 1): xo = tail() + sum(k.prefetch(*x) for x in pf)
            if t == 'a' and len(variants) > 1: k(f's_branch {g.lab("ldx")}')
        k(f'{g.lab("ldx")}:\ns_barrier')
    def csetup(g):
        k = g.k; S = g.BN*2
        k(f's_and_b32 s31, s3, {g.WC-1}\ns_lshr_b32 s30, s3, {g.WC.bit_length()-1}')
        k(f'''v_lshrrev_b32 v3, 1, v1
        v_xor_b32 v3, v3, v2
        v_lshlrev_b32 v3, 4, v3
        v_lshl_add_u32 v3, v1, 7, v3
        s_mul_i32 s6, s30, {g.MT*2048}
        v_add_u32 v4, s6, v3
        v_xor_b32 v5, 64, v4''')
        if g.afrag: k(f's_mul_i32 s6, s30, {g.MT*1024}\nv_lshl_add_u32 v4, v0, 4, s6\nv_add_u32 v5, 8192, v4')
        if g.wmode == 'frag':
            g.NB = 1
            k(f'v_lshlrev_b32 v6, 4, v0\ns_mul_i32 s6, s31, {g.NT*1024}\ns_add_u32 s6, s6, 16384\nv_add_u32 v6, s6, v6')
        else:
            g.NB = min(g.NT, 2 if g.BN == 224 else 4)
            k(f'''v_lshrrev_b32 v10, 2, v1
            v_lshl_add_u32 v11, v2, 3, v10
            v_mul_u32_u24 v11, {S}, v11
            v_and_b32 v12, 3, v0
            v_lshl_add_u32 v11, v12, 3, v11
            v_add_u32 v11, 16384, v11
            v_and_b32 v12, 1, v2''')
            if g.BN != 224: k('v_lshrrev_b32 v10, 1, v10\nv_lshl_add_u32 v12, v12, 1, v10')
            for j in range(g.NB):
                k(f's_mul_i32 s6, s31, {g.NT}\ns_add_u32 s6, s6, {j}\nv_xor_b32 v10, s6, v12\nv_lshl_add_u32 v{6+j}, v10, 5, v11')
        for i in range(g.MT*g.NT*4): k(f'v_mov_b32 v{g.ACC+i}, 0')
        k('s_mov_b32 s32, 0')
    def reads(g, kk, F):
        r = []; S = g.BN*2
        ra = [f'ds_read_b128 {vr(F+4*mt,4)}, v{4+kk} offset:{mt*(1024 if g.afrag else 2048)}' for mt in range(g.MT)]
        for nt in range(g.NT):
            d = F + 4*(g.MT+nt)
            if g.wmode == 'frag': r.append(f'ds_read_b128 {vr(d,4)}, v6 offset:{(kk*(g.BN//16)+nt)*1024}')
            else:
                for h in range(2):
                    r.append(f'ds_read_b64_tr_b16 {vr(d+2*h,2)}, v{6+nt % g.NB} offset:{(32*kk+4*h)*S + (nt//g.NB)*g.NB*32}')
        return ra + r
    def mfmas(g, F, T):
        r = []
        for nt in range(g.NT):
            for mt in range(g.MT):
                a, w, c = vr(F+4*mt, 4), vr(F+4*(g.MT+nt), 4), vr(g.acc(mt, nt), 4)
                r.append(f'v_mfma_f32_16x16x32_bf16 {c}, {a}, {w}, {c}' if nt in T else f'v_mfma_f32_16x16x32_bf16 {c}, {w}, {a}, {c}')
        return r
    def mix(g, ms, rs, extra=()):
        k = g.k; rs = list(rs); extra = list(extra)
        per = -(-len(rs) // max(1, len(ms)-min(6, len(ms)//2)))
        for m in ms:
            k(m)
            if rs:
                for _ in range(per):
                    if rs: k(rs.pop(0))
            else:
                for _ in range(2):
                    if extra: k(extra.pop(0))
        for x in rs + extra: k(x)
    def mainloop(g, st, T=(), tag='', extra=(), vm=''):
        k = g.k
        adv = [f's_add_u32 s32, s32, 1', f's_cmp_eq_u32 s32, {g.NS}', f's_mov_b32 s6, {g.STG}', f's_cselect_b32 s6, {-(g.NS-1)*g.STG}, s6',
               f's_cselect_b32 s32, 0, s32'] + [f'v_add_u32 v{i}, s6, v{i}' for i in range(4, 6+g.NB)]
        k.stamp(st); k('s_barrier'); k.stamp(st+1)
        for r in g.reads(0, g.FX): k(r)
        k(f's_mov_b32 s36, {g.nk}\ns_branch {g.lab("mid"+tag)}\n.p2align 4\n{g.lab("loop"+tag)}:\ns_barrier')
        g.mix(g.mfmas(g.FY, T), g.reads(0, g.FX), extra)
        k(f'{g.lab("mid"+tag)}:\ns_waitcnt lgkmcnt(0)')
        g.mix(g.mfmas(g.FX, T), g.reads(1, g.FY), adv + ['s_sub_u32 s36, s36, 1', 's_cmp_lg_u32 s36, 0'])
        k(f's_waitcnt {vm}lgkmcnt(0)\ns_cbranch_scc1 {g.lab("loop"+tag)}\ns_barrier')
        for m in g.mfmas(g.FY, T): k(m)
        k('s_nop 7'); k.stamp(st+2)
    def pack_pair(g, c0, c1, d):
        g.k(f'''v_cvt_pk_bf16_f32 v{d}, v{c0}, v{c0+1}
        v_cvt_pk_bf16_f32 v{d+1}, v{c0+2}, v{c0+3}
        v_cvt_pk_bf16_f32 v{d+2}, v{c1}, v{c1+1}
        v_cvt_pk_bf16_f32 v{d+3}, v{c1+2}, v{c1+3}
        s_nop 1
        v_permlane16_swap_b32 v{d}, v{d+2}
        v_permlane16_swap_b32 v{d+1}, v{d+3}''')
    def pg16(g, d):
        g.k(f'v_and_b32 v{d}, 1, v2\nv_lshlrev_b32 v{d}, 5, v{d}\nv_lshrrev_b32 v3, 1, v2\nv_lshl_add_u32 v{d}, v3, 4, v{d}')
    def pkaddr(g, d):
        g.pg16(d); g.k(f'v_lshlrev_b32 v{d}, 4, v{d}\nv_lshl_add_u32 v{d}, v1, 4, v{d}')
```

```python
from core import *
from util import *
from k012 import unpack
ZS, TB, QS, SY, WSG = 122880, 151552, 98304, 155648, 122880
WO = [16, 17, 18, 19, 24, 25, 26]

def PF(c): return [x for x, w in zip(((S_WSP, 0, 4*MB), (S_WSP, 4*MB, 4*MB), (S_WOUT, 0, 1792*2048)), OPT.get('pf', 'DCD')) if w == c]

def attn(k):
    S0, OA, LA, QF, KF, ON = 32, 176, 192, 208, 216, 248
    k(f'''s_lshr_b32 s16, s3, 2
    s_and_b32 s17, s3, 3
    s_lshl_b32 s6, s5, 1
    s_add_u32 s18, s6, s16
    s_lshl_b32 s19, s18, 17
    s_lshl_b32 s26, s4, 2
    v_add_u32 v4, 2, v1
    v_subrev_u32 v4, s4, v4
    v_cmp_le_u32 s[56:57], 3, v4
    s_add_u32 s26, s26, s17
    v_and_b32 v1, 31, v0
    v_lshrrev_b32 v2, 5, v0''')
    k.srd(12, S_WS, QKV+32*131072, 131072, 19); k.srd(20, S_WS, QKV+64*131072, 131072, 19); k.srd(40, S_WS, O_, 4*MB)
    k('s_mov_b32 s24, 0xf149f2ca\nv_mov_b32 v6, s24\nv_lshlrev_b32 v7, 2, v2\nv_sub_u32 v7, v1, v7')
    k('s_cmp_lt_u32 s26, 8\ns_cselect_b32 s25, s24, 0\nv_mov_b32 v8, s25')
    for i in range(16):
        kl = 8*(i//4) + i % 4
        k(f'v_cmp_le_i32 vcc, {kl}, v7\ns_nop 1\nv_cndmask_b32 v{S0+128+i}, v6, 0, vcc\nv_cndmask_b32 v{S0+i}, v8, v6, vcc')
    for b in range(1, 8):
        k(f's_add_u32 s27, s26, {b}\ns_cmp_lt_u32 s27, 8\ns_cselect_b32 s27, s24, 0')
        for i in range(16): k(f'v_mov_b32 v{S0+16*b+i}, s27')
    for i in range(32): k(f'v_mov_b32 v{OA+i}, 0')
    for i in range(4): k(f'v_mov_b32 v{ON+i}, 0x3f803f80')
    k(f'''v_lshrrev_b32 v9, 2, v1
    v_and_b32 v9, 3, v9
    v_xor_b32 v9, v9, v2
    v_lshlrev_b32 v9, 4, v9
    v_lshl_add_u32 v9, v1, 6, v9
    s_mul_i32 s27, s16, 24576
    s_lshl_b32 s6, s17, 11
    s_add_u32 s7, s6, s27
    v_add_u32 v9, s7, v9
    v_xor_b32 v10, 32, v9
    v_bfe_u32 v11, v0, 2, 2
    v_lshl_add_u32 v11, v2, 2, v11
    v_lshlrev_b32 v11, 6, v11
    v_bfe_u32 v12, v0, 4, 1
    v_lshl_add_u32 v11, v12, 5, v11
    v_and_b32 v12, 3, v0
    v_lshl_add_u32 v11, v12, 3, v11
    s_add_u32 s7, s7, 49152
    v_add_u32 v11, s7, v11
    v_lshlrev_b32 v12, 6, v1
    v_lshl_add_u32 v12, v2, 4, v12
    s_lshl_b32 s28, s3, 11
    s_add_u32 s28, s28, {QS}
    v_add_u32 v12, s28, v12
    s_lshl_b32 s6, s17, 10
    s_add_u32 s27, s27, s6
    s_lshl_b32 s7, s4, 13
    s_add_u32 s6, s6, s7
    s_sub_u32 s6, s6, 16384
    v_lshlrev_b32 v4, 4, v0
    v_and_b32 v5, 48, v0
    v_xor_b32 v5, v4, v5
    v_add_u32 v4, s6, v4
    v_add_u32 v5, s6, v5''')
    k.sync([(0, 5, 4, 4)], 14, 's[56:57]'); k.stamp(4)
    for i in range(6): k(f's_add_u32 m0, s27, {4096*i}\ns_nop 0\nbuffer_load_dwordx4 v5, s[12:15], 0 offen sc1 lds\nv_add_u32 v5, 4096, v5')
    for i in range(6): k(f's_add_u32 m0, s27, {49152+4096*i}\ns_nop 0\nbuffer_load_dwordx4 v4, s[20:23], 0 offen sc1 lds\nv_add_u32 v4, 4096, v4')
    k('s_waitcnt vmcnt(6)\ns_barrier'); k.stamp(5)
    k(f'ds_read_b128 {vr(QF,4)}, v12\nds_read_b128 {vr(QF+4,4)}, v12 offset:32')
    def kread(b): k(f'ds_read_b128 {vr(KF+8*(b%4),4)}, v9 offset:{2048*b}\nds_read_b128 {vr(KF+8*(b%4)+4,4)}, v10 offset:{2048*b}')
    def vmax(b):
        s = S0+16*b
        if b == 0: k(f'v_max_f32 v13, v{s}, v{s+1}')
        for i in range(1 if b == 0 else 0, 8): k(f'v_max3_f32 v13, v{s+2*i}, v{s+2*i+1}, v13')
    for b in range(3): kread(b)
    for b in range(9):
        if b+3 < 9: kread(b+3)
        k(f's_waitcnt lgkmcnt({2*min(3, 8-b)})')
        for t in range(2): k(f'v_mfma_f32_32x32x16_bf16 {vr(S0+16*b,16)}, {vr(KF+8*(b%4)+4*t,4)}, {vr(QF+4*t,4)}, {vr(S0+16*b,16)}')
        if b == 2: k('s_nop 1')
        if b >= 2: vmax(b-2)
    k('s_waitcnt vmcnt(0)\ns_barrier')
    k.stamp(28); k('s_cmp_lt_u32 s3, 4\ns_cbranch_scc1 L_nst')
    for i in range(7): k(f's_add_u32 m0, s32, {WSG+4096*i}\ns_nop 0\nbuffer_load_dwordx4 v{WO[i]}, s[44:47], s33 offen lds')
    if 'T' in OPT.get('col', ''): k.prefetch(S_WO, 'col', 2*MB); k('v_mov_b32 v251, v250')
    k('L_nst:')
    for x in PF('T'): k.prefetch(*x, 8, 3)
    k.stamp(29)
    def vread(b):
        for t in range(2):
            for j in range(2): k(f'ds_read_b64_tr_b16 {vr(KF+8*(b%4)+4*t+2*j,2)}, v11 offset:{2048*b+1024*t+512*j}')
    vread(0); vread(1); k('s_nop 3'); vmax(7); vmax(8)
    k(f'''v_mov_b32 v14, v13
    s_mov_b32 s24, 0x3e8293ee
    s_mov_b32 s25, s24
    v_permlane32_swap_b32 v14, v13
    v_max_f32 v13, v13, v14
    v_mul_f32_e64 v14, s24, -v13
    v_mov_b32 v15, v14''')
    for b in range(9):
        s = S0+16*b
        if b+2 < 9: vread(b+2)
        for i in range(8): k(f'v_pk_fma_f32 {vr(s+2*i,2)}, {vr(s+2*i,2)}, s[24:25], v[14:15]')
        for i in range(16): k(f'v_exp_f32 v{s+i}, v{s+i}')
        for i in range(8): k(f'v_cvt_pk_bf16_f32 v{s+i}, v{s+2*i}, v{s+2*i+1}')
        k(f's_waitcnt lgkmcnt({4*min(2, 8-b)})\ns_nop 0')
        for t in range(2):
            k(f'v_mfma_f32_32x32x16_bf16 {vr(OA,16)}, {vr(KF+8*(b%4)+4*t,4)}, {vr(s+4*t,4)}, {vr(OA,16)}')
            k(f'v_mfma_f32_32x32x16_bf16 {vr(LA,16)}, {vr(ON,4)}, {vr(s+4*t,4)}, {vr(LA,16)}')
    k(f'''v_lshrrev_b32 v4, 4, v1
    v_lshl_add_u32 v4, v4, 2, v2
    v_and_b32 v1, 15, v0
    v_lshl_add_u32 v4, v4, 4, v1
    v_lshlrev_b32 v4, 4, v4
    s_lshl_b32 s6, s4, 18
    s_lshl_b32 s7, s18, 13
    s_add_u32 s6, s6, s7
    s_lshl_b32 s7, s17, 11
    s_add_u32 s6, s6, s7
    v_lshrrev_b32 v2, 4, v0
    s_nop 7
    v_rcp_f32 v13, v{LA}
    s_nop 0''')
    for i in range(16): k(f'v_mul_f32 v{OA+i}, v{OA+i}, v13')
    for i in range(8): k(f'v_cvt_pk_bf16_f32 v{16+i}, v{OA+2*i}, v{OA+2*i+1}')
    k(f'''s_nop 1
    v_permlane32_swap_b32 v16, v18
    v_permlane32_swap_b32 v17, v19
    v_permlane32_swap_b32 v20, v22
    v_permlane32_swap_b32 v21, v23
    buffer_store_dwordx4 v[16:19], v4, s[40:43], s6 offen sc1
    buffer_store_dwordx4 v[20:23], v4, s[40:43], s6 offen offset:512 sc1''')
    k.stamp(6); k('s_waitcnt vmcnt(2)\ns_barrier'); k.arrive(1)

def repack(k):
    k.srd(8, S_WS, WP, 7*MB); k.srd(12, S_WS, CS2, 16*16*896)
    k(f'''v_lshrrev_b32 v5, 2, v1
    v_lshl_add_u32 v5, v2, 3, v5
    v_mul_u32_u24 v5, 448, v5
    v_and_b32 v6, 3, v0
    v_lshl_add_u32 v5, v6, 3, v5
    v_and_b32 v6, 1, v2
    v_xor_b32 v6, s3, v6
    v_lshl_add_u32 v5, v6, 5, v5
    v_add_u32 v5, {WSG}, v5''')
    for j in range(4):
        for kk in range(2):
            for h in range(2): k(f'ds_read_b64_tr_b16 {vr(128+8*j+4*kk+2*h,2)}, v5 offset:{(32*kk+4*h)*448+128*j}')
    k(f'''s_lshl_b32 s6, s5, 4
    s_add_u32 s6, s6, s4
    s_mul_i32 s6, s6, 28672
    s_lshl_b32 s7, s3, 10
    s_add_u32 s26, s6, s7
    s_lshl_b32 s7, s4, 4
    s_add_u32 s7, s7, s5
    s_mul_i32 s7, s7, 896
    s_lshl_b32 s27, s3, 6
    s_add_u32 s27, s7, s27
    v_lshlrev_b32 v176, 4, v0
    v_add_u32 v177, 14336, v176
    v_lshlrev_b32 v178, 2, v1
    s_waitcnt lgkmcnt(0)''')
    for j in range(4):
        for kk in range(2): k(f'v_mfma_f32_16x16x32_bf16 {vr(160+4*j,4)}, v[248:251], {vr(128+8*j+4*kk,4)}, {vr(160+4*j,4) if kk else 0}')
    k = K('tmp', 0, 0, 0, 0); k('s_nop 4')
    k.spin(*((12, 1) if OPT.get('rp', 'cnt') == 'go' else (8, 9)), 179)
    for j in range(4):
        if j == 3: k('s_cmp_ge_u32 s3, 2\ns_cbranch_scc1 L_rp')
        k(f'''buffer_store_dwordx4 {vr(128+8*j,4)}, v176, s[8:11], s26 offen sc1
        buffer_store_dwordx4 {vr(132+8*j,4)}, v177, s[8:11], s26 offen sc1
        s_add_u32 s26, s26, 4096
        s_mov_b64 exec, 0xffff
        buffer_store_dword v{160+4*j}, v178, s[12:15], s27 offen offset:{256*j} sc1
        s_mov_b64 exec, -1''')
    k('L_rp:')
    return '\n'.join(k.L)

def res_compute(g, st, res_ptr, res_off, out_ptr, out_off, stats):
    k = g.k; R = g.FREE; sc = ' sc1' if stats else ''
    k.srd(16, res_ptr, res_off, 4*MB); k.srd(40, out_ptr, out_off, 4*MB); k.srd(44, S_WS, ST, 32768)
    g.pg16(13)
    k(f'''v_lshl_add_u32 v13, v1, 11, v13
    v_add_u32 v14, 32768, v13
    s_lshl_b32 s38, s4, 18
    s_lshl_b32 s6, s3, 16
    s_add_u32 s38, s38, s6
    s_lshl_b32 s6, s5, 7
    s_add_u32 s38, s38, s6
    s_lshl_b32 s50, s4, 18
    s_lshl_b32 s6, s5, 14
    s_add_u32 s50, s50, s6
    s_lshl_b32 s6, s3, 11
    s_add_u32 s50, s50, s6
    s_add_u32 s51, s50, 8192''')
    g.pkaddr(15)
    rm = lambda mt, p, sr: f'v{13+mt}, s[{sr}:{sr+3}], s38 offen offset:{64*p}'
    pk = lambda mt, p, sr: f'v15, s[{sr}:{sr+3}], s{50+p} offen offset:{1024*mt} sc1'
    ld, so = (rm, pk) if stats else (pk, rm)
    for mt in range(2):
        for p in range(2): k(f'buffer_load_dwordx4 {vr(R+8*mt+4*p,4)}, {ld(mt, p, 16)}')
    g.csetup()
    if stats: k(stats)
    g.mainloop(st, extra=[f's_cmp_lg_u32 s36, {g.nk-7}\ns_cbranch_scc1 L_nc\ns_waitcnt vmcnt(0)\nL_nc:'] if stats else [])
    if not stats and OPT.get('fl', 1): k('v_lshrrev_b32 v4, 3, v1\nv_mul_u32_u24 v4, 16320, v4\nv_sub_u32 v13, v13, v4\nv_sub_u32 v14, v14, v4\ns_add_u32 s39, s38, 16384')
    k('s_waitcnt vmcnt(0)')
    T = g.FX
    for mt in range(2):
        for p in range(2):
            r = R+8*mt+4*p; c = g.acc(mt, 2*p); d = g.FY + 8*mt + 4*p
            k(f'v_permlane16_swap_b32 v{r}, v{r+2}\nv_permlane16_swap_b32 v{r+1}, v{r+3}')
            unpack(k, r, 4, T)
            for i in range(4): k(f'v_pk_add_f32 {vr(c+2*i,2)}, {vr(c+2*i,2)}, {vr(T+2*i,2)}')
            g.pack_pair(c, c+4, d)
            if stats or not OPT.get('fl', 1): k(f'buffer_store_dwordx4 {vr(d,4)}, {so(mt, p, 40)}' + ('' if stats else ' nt'))
        if not stats and OPT.get('fl', 1):
            for i in range(4): k(f'v_mov_b32 v{T+i}, v{d-4+i}')
            for i in range(4): k(f'v_mov_b32_dpp v{d-4+i}, v{d+i} row_ror:8 row_mask:0xf bank_mask:0xc')
            for i in range(4): k(f'v_mov_b32_dpp v{d+i}, v{T+i} row_ror:8 row_mask:0xf bank_mask:0x3')
            k(f'buffer_store_dwordx4 {vr(d-4,4)}, v{13+mt}, s[40:43], s38 offen nt\nbuffer_store_dwordx4 {vr(d,4)}, v{13+mt}, s[40:43], s39 offen nt')
    if not stats: return
    for mt in range(2):
        unpack(k, g.FY + 8*mt, 8, T)
        k(f'v_pk_mul_f32 {vr(T+16,2)}, {vr(T,2)}, {vr(T,2)}')
        for i in range(1, 8): k(f'v_pk_fma_f32 {vr(T+16,2)}, {vr(T+2*i,2)}, {vr(T+2*i,2)}, {vr(T+16,2)}\nv_pk_add_f32 {vr(T,2)}, {vr(T,2)}, {vr(T+2*i,2)}')
        k(f'v_add_f32 v{4+mt}, v{T}, v{T+1}\nv_add_f32 v{6+mt}, v{T+16}, v{T+17}')
    k(f'''v_lshrrev_b32 v8, 5, v0
    v_lshl_add_u32 v8, v8, 4, v1
    v_permlane32_swap_b32 v4, v5
    v_permlane32_swap_b32 v6, v7
    v_add_f32 v4, v4, v5
    v_add_f32 v6, v6, v7
    v_and_b32 v9, 1, v2
    v_lshlrev_b32 v9, 2, v9
    v_permlane16_swap_b32 v4, v6
    v_lshl_add_u32 v8, v8, 3, v9
    v_add_f32 v4, v4, v6
    s_lshl_b32 s6, s4, 10
    s_lshl_b32 s7, s3, 8
    s_add_u32 s6, s6, s7
    buffer_atomic_add_f32 v4, v8, s[44:47], s6 offen''')
    k.stamp(27); k.arrive(2)

def win_compute(g, wc):
    k = g.k; nz = 4 - wc; Z = list(range(nz)); Y = list(range(nz, 7))
    g.mainloop(10, Z, 'ab'[wc])
    F = g.FX; R4 = F; N4 = F+16; CT = F+32; T = F+40; PQ = F+44; RR = F+76; CC = F+84
    k(f'''s_lshl_b32 s6, s30, 8
    s_add_u32 s6, s6, {TB}
    v_lshl_add_u32 v4, v2, 4, s6
    v_lshl_add_u32 v14, v1, 2, s6
    s_mov_b32 s6, {TB+1024+448*wc}
    v_lshl_add_u32 v5, v1, 2, s6
    v_lshl_add_u32 v15, v2, 4, s6
    v_mov_b32 v10, 0xc0135761
    v_mov_b32 v11, v10''')
    def rd_rn(o):
        for mt in range(4): k(f'ds_read_b128 {vr(R4+4*mt,4)}, v4 offset:{64*mt}\nds_read_b128 {vr(N4+4*mt,4)}, v4 offset:{o+64*mt}')
    rd_rn(512)
    for nt in Z: k(f'ds_read_b32 v{CT+2*nt}, v5 offset:{64*nt}')
    k('s_waitcnt lgkmcnt(0)')
    for mt in range(4): k(f'ds_read_b32 v{RR+2*mt}, v14 offset:{64*mt}\nds_read_b32 v{RR+2*mt+1}, v14 offset:{512+64*mt}')
    for nt in Y: k(f'ds_read_b128 {vr(CC+4*(nt-nz),4)}, v15 offset:{64*nt}')
    for mt in range(4):
        P, Q = PQ + 8*mt, PQ + 8*mt + 4
        for nt in Z:
            c = g.acc(mt, nt)
            for i in (0, 2): k(f'v_pk_mul_f32 {vr(c+i,2)}, {vr(c+i,2)}, {vr(R4+4*mt+i,2)}')
            for i in (0, 2): k(f'v_pk_fma_f32 {vr(c+i,2)}, {vr(N4+4*mt+i,2)}, {vr(CT+2*nt,2)}, {vr(c+i,2)} op_sel_hi:[1,0,1]')
            gelu4(k, c, T)
            for i in (0, 2):
                if nt == 0: k(f'v_mov_b32 v{P+i}, v{c+i}\nv_mov_b32 v{P+i+1}, v{c+i+1}\nv_pk_mul_f32 {vr(Q+i,2)}, {vr(c+i,2)}, {vr(c+i,2)}')
                else: k(f'v_pk_add_f32 {vr(P+i,2)}, {vr(P+i,2)}, {vr(c+i,2)}\nv_pk_fma_f32 {vr(Q+i,2)}, {vr(c+i,2)}, {vr(c+i,2)}, {vr(Q+i,2)}')
    k(f'''v_bfe_u32 v6, v0, 3, 1
    v_lshlrev_b32 v6, 2, v6
    v_add_u32 v6, v6, v2
    v_lshlrev_b32 v6, 1, v6
    v_bfe_u32 v7, v0, 2, 1
    v_add_u32 v6, v6, v7
    v_lshlrev_b32 v6, 2, v6
    v_and_b32 v7, 3, v0
    v_add_lshl_u32 v6, v6, v7, 2
    s_mov_b32 s56, 0xaaaaaaaa
    s_mov_b32 s57, s56
    s_mov_b32 s58, 0xcccccccc
    s_mov_b32 s59, s58
    s_lshl_b32 s38, s4, 10
    s_lshl_b32 s7, s30, 9
    s_add_u32 s38, s38, s7
    s_add_u32 s38, s38, 16384''')
    dpp = lambda d, a, m, bm: k(f'v_add_f32_dpp v{d}, v{a}, v{a} {m} row_mask:0xf bank_mask:{bm}')
    for i in range(2):
        a, b = PQ + 16*i, PQ + 16*i + 8
        for j in range(8): dpp(a+j, a+j, 'row_ror:8', '0x3')
        for j in range(8): dpp(a+j, b+j, 'row_ror:8', '0xc')
        four = [a, a+1, a+4, a+5]
        for j in four: dpp(j, j, 'row_shl:4', '0x5')
        for j in four: dpp(j, j+2, 'row_shr:4', '0xa')
        for j in four: dpp(j, j, 'quad_perm:[2,3,0,1]', '0xf')
        for j in four: dpp(j, j, 'quad_perm:[1,0,3,2]', '0xf')
        k(f'''v_cndmask_b32 v{a}, v{a}, v{a+4}, s[56:57]
        v_cndmask_b32 v{a+1}, v{a+1}, v{a+5}, s[56:57]
        v_cndmask_b32 v{a}, v{a}, v{a+1}, s[58:59]
        buffer_atomic_add_f32 v{a}, v6, s[44:47], s38 offen offset:{256*i}''')
    k(f's_mul_i32 s6, s30, {4*3584}\ns_add_u32 s6, s6, {ZS}\nv_lshl_add_u32 v14, v0, 3, s6\ns_waitcnt lgkmcnt(0)')
    def z1(mt):
        r = vr(RR+2*mt, 2)
        for nt in Y:
            c = g.acc(mt, nt)
            for i in (0, 2): k(f'v_pk_mul_f32 {vr(c+i,2)}, {vr(c+i,2)}, {r} op_sel_hi:[1,0]')
            for i in (0, 2): k(f'v_pk_fma_f32 {vr(c+i,2)}, {vr(CC+4*(nt-nz)+i,2)}, {r}, {vr(c+i,2)} op_sel:[0,1,0]')
            gelu4(k, c, T)
            k(f'v_cvt_pk_bf16_f32 v{c}, v{c}, v{c+1}\nv_cvt_pk_bf16_f32 v{c+1}, v{c+2}, v{c+3}')
            k(f'ds_write_b64 v14, {vr(c,2)} offset:{(mt*7 + nt - nz + 3*wc)*512}')
    k.stamp(13); z1(0); z1(1); k.arrive(3); z1(2)
    k.spin(28, 1, 6); k.stamp(14)
    k(f'''v_lshlrev_b32 v7, 3, v0
    buffer_load_dwordx2 v[8:9], v7, s[44:47], s38 offen sc1
    s_lshl_b32 s7, s3, 9
    s_add_u32 s7, s7, {TB+2048}
    v_lshl_add_u32 v6, v0, 2, s7
    v_lshl_add_u32 v4, v2, 4, s7''')
    g.pkaddr(12)
    k(f'''    s_lshl_b32 s39, s5, 6
    s_lshl_b32 s7, s4, 2
    s_add_u32 s39, s39, s7
    s_lshl_b32 s7, s30, 1
    s_add_u32 s39, s39, s7
    s_mul_i32 s39, s39, 7168
    s_add_u32 s39, s39, {4096*wc}''')
    z1(3)
    k('s_waitcnt vmcnt(0)'); rstats(k, 8, 9, '0x3a124925')
    k('ds_write_b32 v6, v8\nds_write_b32 v6, v9 offset:256\ns_waitcnt lgkmcnt(0)')
    rd_rn(256); k('s_waitcnt lgkmcnt(0)')
    n = 0
    for i in range(2):
        for nt in Z:
            for mt in (2*i, 2*i+1):
                c = g.acc(mt, nt)
                for j in (0, 2): k(f'v_pk_fma_f32 {vr(c+j,2)}, {vr(c+j,2)}, {vr(R4+4*mt+j,2)}, {vr(N4+4*mt+j,2)}')
            d = PQ + 4*n; n += 1
            g.pack_pair(g.acc(2*i, nt), g.acc(2*i+1, nt), d)
            k(f'buffer_store_dwordx4 {vr(d,4)}, v12, s[16:19], s39 offen offset:{nt*1024} sc1')
        k('s_add_u32 s39, s39, 7168')
    k.stamp(15); k.arrive(4)

def win_pre(k):
    def pre(ph):
        if ph == 0:
            k.srd(44, S_WS, ST, 32768); k.srd(40, S_WS, CS2, 16*16*896)
            k(f'''s_lshl_b32 s6, s29, 6
            v_add_u32 v24, s6, v0
            v_and_b32 v25, 127, v24
            v_lshlrev_b32 v23, 3, v25
            s_lshl_b32 s6, s4, 10
            buffer_load_dwordx2 v[26:27], v23, s[44:47], s6 offen sc1
            v_min_u32 v22, 223, v24
            v_lshlrev_b32 v22, 2, v22
            s_mul_i32 s6, s5, 896''')
            for i in range(16): k(f'buffer_load_dword v{28+i}, v22, s[40:43], s6 offen sc1\ns_add_u32 s6, s6, 14336')
        else:
            rstats(k, 26, 27, '0x3a800000')
            for i in range(1, 16): k(f'v_add_f32 v28, v28, v{28+i}')
            k(f'''s_mov_b32 s6, {TB}
            v_lshl_add_u32 v25, v25, 2, s6
            v_lshl_add_u32 v24, v24, 2, s6
            ds_write_b32 v25, v26
            ds_write_b32 v25, v27 offset:512
            ds_write_b32 v24, v28 offset:1024
            s_waitcnt lgkmcnt(0)''')
    return pre

def sp_compute(g):
    k = g.k; ZR = g.FREE; BB = ZR + 28
    k.srd(40, S_WS, U_, 2048*3584); k.srd(44, S_BSP, 0, 4096)
    k(f's_lshl_b32 s38, s4, 3\ns_lshl_b32 s7, s3, 1\ns_add_u32 s38, s38, s7\ns_lshl_b32 s7, s38, 5\nv_lshlrev_b32 v15, 1, v1')
    for mt in range(2): k(f'buffer_load_ushort v{BB+2*mt}, v15, s[44:47], s7 offen offset:{32*mt}')
    g.csetup(); g.mainloop(16)
    k(f's_mul_i32 s6, s3, 7168\ns_add_u32 s6, s6, {ZS}\nv_lshl_add_u32 v6, v0, 3, s6')
    for i in range(14): k(f'ds_read_b64 {vr(ZR+2*i,2)}, v6 offset:{512*i}')
    g.pkaddr(4)
    k(f'''v_and_b32 v5, 1, v2
    v_lshrrev_b32 v3, 1, v2
    v_lshl_add_u32 v5, v5, 2, v3
    v_lshl_add_u32 v5, v5, 4, v1
    v_lshlrev_b32 v5, 4, v5
    s_mul_i32 s6, s4, {128*3584}
    s_lshr_b32 s7, s5, 1
    s_mul_i32 s7, s7, {7*8192}
    s_add_u32 s6, s6, s7
    s_lshl_b32 s7, s3, 11
    s_add_u32 s6, s6, s7
    s_waitcnt vmcnt(0) lgkmcnt(0)
    v_lshlrev_b32 v{BB}, 16, v{BB}
    v_lshlrev_b32 v{BB+2}, 16, v{BB+2}
    s_bitcmp1_b32 s5, 0
    s_cbranch_scc1 {g.lab('odd')}''')
    T = g.FX
    def prep(mt, nt):
        c = g.acc(mt, nt)
        unpack(k, ZR+14*mt+2*nt, 2, T)
        for i in (0, 2): k(f'v_pk_add_f32 {vr(c+i,2)}, {vr(c+i,2)}, {vr(BB+2*mt,2)} op_sel_hi:[1,0]')
        for i in (0, 2): k(f'v_pk_mul_f32 {vr(c+i,2)}, {vr(c+i,2)}, {vr(T+i,2)}')
        return c
    for odd in range(2):
        d = T + 4
        for i in range(3):
            k(f's_add_u32 s7, s6, {(4*odd+i)*8192}')
            for mt in range(2):
                g.pack_pair(prep(mt, 2*i+odd), prep(mt, 2*i+odd+1), d)
                k(f'buffer_store_dwordx4 {vr(d,4)}, v4, s[40:43], s7 offen offset:{1024*mt} sc1'); d += 4
        g.pack_pair(prep(0, 6-6*odd), prep(1, 6-6*odd), d)
        k(f's_add_u32 s7, s6, {3*8192}\nbuffer_store_dwordx4 {vr(d,4)}, v5, s[40:43], s7 offen offset:{512*odd} sc1')
        k(f's_branch {g.lab("ex")}\n{g.lab("odd")}:' if odd == 0 else f'{g.lab("ex")}:')
    k.stamp(26); k.arrive(5)

def k_mega():
    k = K('sequential_preLN__sliding_block__mixer_gmlp__prompt', 256, 512, 163840, 256); o = OPT
    Q = Gemm(k, 'q', 192, 1024, 2048, 6144, 2, 2, o.get('qNS', 4), 'tr', 128, ((0, 0), (4, 1984), (8, 3968), (12, -128), (16, 1856), (20, 3840)))
    C = Gemm(k, 'c', 64, 1024, 2048, 2048, 4, 1, 6, 'tr', afrag=True)
    D = Gemm(k, 'd', 224, 1024, 2048, 0, 2, 2, 3, 'frag', afrag=True)
    DT = Gemm(k, 'dt', 224, 1024, 2048, 7168, 2, 2, 3, 'tr', 224, ((0, 3584), (8, -128), (14, 3488), (20, -224)), True)
    E = Gemm(k, 'e', 112, 2048, 4096, 0, 4, 1, 4, 'frag')
    F = Gemm(k, 'f', 64, 1792, 3584, 2048, 4, 1, 6, 'tr', afrag=True)
    xr = o.get('xr', 4); lx = xr.bit_length()-1; nxc = 16//(32//xr); lc = nxc.bit_length()-1
    k(f'''s_cmp_ge_u32 s2, 256
    s_cbranch_scc1 {k.lab('end')}
    s_load_dwordx16 s[64:79], s[0:1], 0
    s_load_dwordx4 s[80:83], s[0:1], 64
    s_load_dwordx2 s[84:85], s[0:1], 80
    v_lshrrev_b32 v1, 6, v0
    v_and_b32 v0, 63, v0
    v_readfirstlane_b32 s3, v1
    s_and_b32 s6, s2, 7
    s_lshr_b32 s7, s2, 3
    s_lshr_b32 s4, s6, {lc}
    s_lshl_b32 s4, s4, {lx}
    s_and_b32 s28, s7, {xr-1}
    s_add_u32 s4, s4, s28
    s_and_b32 s5, s6, {nxc-1}
    s_mul_i32 s5, s5, {32//xr}
    s_lshr_b32 s28, s7, {lx}
    s_add_u32 s5, s5, s28
    s_xor_b32 s5, s5, {o.get('x5', 0)}
    v_and_b32 v1, 15, v0
    v_lshrrev_b32 v2, 4, v0
    s_mov_b32 s37, 1000000
    v_mov_b32 v254, {SY}
    s_sub_u32 s29, s3, 4
    s_waitcnt lgkmcnt(0)''')
    k.srd(60, S_WS, FL, 65536)
    k(f's_cmp_lt_u32 s3, 4\ns_cbranch_scc1 {k.lab("cq")}')
    k.stamp(0)
    def qtail():
        lb = k.uid('dbg')
        k.srd(44, S_WS, LS, 16384); k.srd(40, S_WS, CS, 16*16*768)
        k(f'''s_lshl_b32 s7, s4, 7
        s_add_u32 s7, s7, s5
        s_lshl_b32 s7, s7, 2
        s_add_u32 s7, s7, {7*8192}
        {lb}:
        buffer_load_dword v16, off, s[60:63], s7 sc1
        s_sub_u32 s37, s37, 1
        s_cselect_b32 s37, 0, s37
        s_cbranch_scc1 {lb}x
        s_waitcnt vmcnt(0)
        v_readfirstlane_b32 s6, v16
        s_cmp_lg_u32 s6, 1
        s_cbranch_scc1 {lb}
        {lb}x:
        s_lshl_b32 s6, s29, 6
        v_add_u32 v24, s6, v0
        v_and_b32 v25, 127, v24
        v_lshlrev_b32 v23, 3, v25
        s_lshl_b32 s6, s4, 10
        buffer_load_dwordx2 v[26:27], v23, s[44:47], s6 offen sc1
        v_min_u32 v22, 191, v24
        v_lshlrev_b32 v22, 2, v22
        s_mul_i32 s6, s5, 768''')
        for i in range(16): k(f'buffer_load_dword v{28+i}, v22, s[40:43], s6 offen sc1\ns_add_u32 s6, s6, {16*768}')
        return 17
    Q.loader(S_X, 0, S_WQKV, 0, 1024*6144, tail=qtail, pf=((S_WO, 0, 2*MB),))
    k('v_lshl_add_u32 v3, v1, 2, v254\nv_mov_b32 v4, 0\nds_write_b32 v3, v4\ns_waitcnt vmcnt(1)')
    for i in range(1, 16): k(f'v_add_f32 v28, v28, v{28+i}')
    k(f'''s_mov_b32 s6, {TB}
    v_lshl_add_u32 v25, v25, 2, s6
    v_lshl_add_u32 v24, v24, 2, s6
    ds_write_b32 v25, v26
    ds_write_b32 v25, v27 offset:512
    ds_write_b32 v24, v28 offset:1024
    s_mul_i32 s33, s4, {64*7168}
    s_lshl_b32 s32, s29, 10
    s_lshl_b32 s6, s2, 2
    s_add_u32 s6, s6, s29
    s_lshl_b32 s6, s6, 11
    v_lshlrev_b32 v4, 5, v0
    s_waitcnt lgkmcnt(0)
    s_barrier''')
    DT.woffs(WO); k(f's_mul_i32 s6, s5, 224'); k.srd(44, S_WIN, 0, 1024*7168, 6); k('s_sub_u32 s46, s46, s6')
    k(f's_branch {k.lab("attn")}\n{k.lab("cq")}:')
    k.stamp(0)
    F0 = Q.FX; W0, X0, A8 = 192, 224, 240
    Q.csetup()
    k.srd(8, S_WQKV, 0, 1024*6144); k.srd(12, S_WS, CS, 16*16*768); k.srd(20, S_X, 0, 4*MB); k.srd(24, S_WS, ST, 114688)
    k(f'''s_lshl_b32 s28, s4, 4
    s_add_u32 s28, s28, s5
    s_lshl_b32 s6, s28, 2
    s_add_u32 s41, s6, s3
    s_lshl_b32 s6, s41, 12
    v_lshlrev_b32 v10, 4, v0''')
    for i in range(4): k(f'buffer_load_dwordx4 {vr(X0+4*i,4)}, v10, s[20:23], s6 offen offset:{1024*i}')
    k(f'''s_lshl_b32 s41, s41, 4
    s_add_u32 s41, s41, {LS-ST}
    s_mul_i32 s40, s28, 768
    s_lshl_b32 s7, s3, 8
    s_add_u32 s40, s40, s7
    s_cmp_eq_u32 s3, 3
    s_cbranch_scc1 L_xs
    v_lshrrev_b32 v10, 3, v0
    v_and_b32 v11, 7, v0
    v_lshlrev_b32 v11, 4, v11
    s_mov_b32 s6, 6144
    v_mad_u32_u24 v10, v10, s6, v11
    s_mul_i32 s6, s4, {64*6144}
    s_lshl_b32 s7, s3, 11
    s_add_u32 s6, s6, s7
    s_lshl_b32 s7, s5, 7
    s_add_u32 s6, s6, s7''')
    for i in range(8): k(f'buffer_load_dwordx4 {vr(W0+4*i,4)}, v10, s[8:11], s6 offen\ns_add_u32 s6, s6, {8*6144}')
    k(f'''s_branch L_qm
    L_xs:
    s_lshl_b32 s28, s28, 6
    v_lshlrev_b32 v10, 14, v2
    v_lshl_add_u32 v10, v1, 2, v10
    v_lshlrev_b32 v11, 13, v0
    s_lshl_b32 s6, s4, 9
    s_lshl_b32 s7, s5, 2
    s_add_u32 s6, s6, s7
    s_mov_b32 exec_hi, 0
    buffer_store_dword v16, v10, s[24:27], s28 offen sc1
    s_mov_b64 exec, 0xff
    buffer_store_dword v16, v11, s[60:63], s6 offen sc1
    s_mov_b64 exec, -1
    L_qm:
    v_mov_b32 v15, 1
    s_cmp_eq_u32 s3, 0
    s_cselect_b32 s39, {Q.nk-o.get('pi', 0)-3}, -1''')
    p = K('tmp', 0, 0, 0, 0)
    nq = (p.prefetch(S_WQKV, 'col', 6*MB, wv=3) if 'Q' in o.get('col', '') else 0) + (p.prefetch(S_X, 'row', 4*MB, wv=3) if 'X' in o.get('col', '') else 0)
    p(f's_waitcnt vmcnt({nq})')
    if 'q' in o.get('col', ''): p.prefetch(S_WQKV, 'col', 6*MB, wv=3)
    p('s_mov_b32 s6, 0x3f803f80')
    for j in range(16):
        for q in range(2):
            a = A8 + 2*(j//8) + q; x = f'v{X0+j}'
            p(f'v_dot2_f32_bf16 v{a}, {x}, {x if q else "s6"}, {f"v{a}" if j % 8 else 0}')
    p('s_nop 2')
    def allsum(n, T, rors):
        for r in rors:
            for j in range(n): p(f'v_add_f32_dpp v{A8+j}, v{A8+j}, v{A8+j} row_ror:{r} row_mask:0xf bank_mask:0xf')
        for q in (16, 32):
            for j in range(n): p(f'v_mov_b32 v{T+j}, v{A8+j}')
            for j in range(n): p(f'v_permlane{q}_swap_b32 v{T+j}, v{A8+j}')
            for j in range(n): p(f'v_add_f32 v{A8+j}, v{A8+j}, v{T+j}')
    allsum(4, A8+4, (8, 4, 2, 1))
    rstats(p, A8, A8+1, '0x3a800000'); rstats(p, A8+2, A8+3, '0x3a800000')
    p(f's_mov_b64 exec, 1\nbuffer_store_dwordx4 {vr(A8,4)}, off, s[24:27], s41 sc1\ns_mov_b64 exec, -1\ns_cmp_eq_u32 s3, 3\ns_cbranch_scc1 L_np')
    for i in range(8):
        unpack(p, W0+4*i, 4, X0 if i else A8)
        if i:
            for j in range(4): p(f'v_pk_add_f32 {vr(A8+2*j,2)}, {vr(A8+2*j,2)}, {vr(X0+2*j,2)}')
    allsum(8, X0, (8,))
    p(f'''v_lshlrev_b32 v10, 5, v0
    s_mov_b64 exec, 0xff
    buffer_store_dwordx4 {vr(A8,4)}, v10, s[12:15], s40 offen sc1
    buffer_store_dwordx4 {vr(A8+4,4)}, v10, s[12:15], s40 offen offset:16 sc1
    s_mov_b64 exec, -1
    L_np:''')
    k.srd(52, 82, 0, 256); k.srd(16, S_WS, QKV, 12*MB); k.srd(44, S_WIN, 0, 64); k('s_mov_b32 s33, 0')
    k(f'v_lshlrev_b32 v13, 9, v2\nv_lshl_add_u32 v13, v1, 2, v13\nv_mov_b32 v14, 1\ns_sub_u32 s38, s39, 2\ns_mov_b32 s50, {7*8192}\ns_mov_b32 s51, {7*8192+4096}')
    k('\n'.join(p.L))
    Q.mainloop(1, extra=[f's_cmp_lg_u32 s36, {Q.nk-o.get("pi", 0)-2}\ns_cbranch_scc1 L_nw\ns_waitcnt vmcnt(0)\nL_nw:',
        's_cmp_lg_u32 s36, s39\ns_cbranch_scc1 L_na\ns_mov_b64 exec, 1\nbuffer_atomic_add v15, off, s[52:55], 0 sc0\ns_mov_b64 exec, -1\nL_na:',
        's_cmp_lg_u32 s36, s38\ns_cbranch_scc1 L_nb\ns_waitcnt vmcnt(0)\nv_readfirstlane_b32 s6, v15\ns_and_b32 s6, s6, 255\ns_cmp_lg_u32 s6, 255\ns_cbranch_scc1 L_nb\n'
        + ''.join(f'buffer_store_dword v14, v13, s[60:63], s{50+i//2} offen offset:{2048*(i%2)} sc1\n' for i in range(4)) + 'L_nb:'])
    RR, CC = F0+48, F0+56
    k(f'''s_barrier
    s_lshl_b32 s6, s30, 8
    s_add_u32 s6, s6, {TB}
    v_lshl_add_u32 v6, v1, 2, s6
    s_lshl_b32 s6, s31, 7
    s_add_u32 s6, s6, {TB+1024}
    v_lshl_add_u32 v7, v2, 4, s6''')
    for mt in range(4): k(f'ds_read_b32 v{RR+2*mt}, v6 offset:{64*mt}\nds_read_b32 v{RR+2*mt+1}, v6 offset:{512+64*mt}')
    for nt in range(6): k(f'ds_read_b128 {vr(CC+4*nt,4)}, v7 offset:{256*(nt//2)+64*(nt%2)}')
    k.stamp(23); Q.pg16(4)
    k(f'''v_lshl_add_u32 v4, v1, 6, v4
    s_lshl_b32 s6, s5, 1
    s_add_u32 s6, s6, s31
    s_lshl_b32 s6, s6, 17
    s_lshl_b32 s7, s4, 13
    s_add_u32 s6, s6, s7
    s_lshl_b32 s7, s30, 12
    s_add_u32 s6, s6, s7
    s_lshl_b32 s28, s31, 13
    s_add_u32 s7, s7, s28
    s_add_u32 s7, s7, {QS}
    v_add_u32 v5, s7, v4
    s_waitcnt lgkmcnt(0)''')
    n = 0
    for p in (1, 2, 0):
        k(f's_add_u32 s6, s6, {32*131072}')
        for mt in range(4):
            d = Q.FX + 4*n; n += 1; c = Q.acc(mt, 2*p); r = vr(RR+2*mt, 2)
            for i in range(0, 8, 2): k(f'v_pk_mul_f32 {vr(c+i,2)}, {vr(c+i,2)}, {r} op_sel_hi:[1,0]')
            for i in range(0, 8, 2): k(f'v_pk_fma_f32 {vr(c+i,2)}, {vr(CC+8*p+i,2)}, {r}, {vr(c+i,2)} op_sel:[0,1,0]')
            Q.pack_pair(Q.acc(mt, 2*p), Q.acc(mt, 2*p+1), d)
            k(f'buffer_store_dwordx4 {vr(d,4)}, v4, s[16:19], s6 offen offset:{mt*1024} sc1' if p else f'ds_write_b128 v5, {vr(d,4)} offset:{mt*1024}')
    k.stamp(24); k.arrive(0); k.stamp(25)
    k(f'{k.lab("attn")}:')
    attn(k)
    k(f's_cmp_lt_u32 s3, 4\ns_cbranch_scc1 {k.lab("cc")}')
    C.loader(S_WS, O_, S_WO, 0, 2*MB, lambda f: k.sync([(1, 4, 5, 8)], 16, mid=f), st=7, pf=PF('C'), pub=(6, 5, 4))
    D.loader(S_WS, H_, S_WS, WP, 0, lambda f: k.sync([(2, 4, 5, 4)], 16, mid=f), pre=win_pre(k), st=10, pf=[(S_WSP, (4096, 4, 128*4096, 32*4096, 128, 3), 8*MB)][:'D' in o.get('own', 'DE')] + PF('D'), dep0=lambda: k.sync([(6, 5, 4, 0)], 16))
    E.loader(S_WSP, 0, S_WS, Z2, 0, lambda f: k.sync([(3, 4, 5, 4), (4, 5, 4, 4)], 16, mid=f), depA=False, st=16, pf=[(S_WOUT, (2048, 5, 128, 32*2048, 128*2048, 3), 1792*2048)][:'E' in o.get('own', 'DE')] + [(S_WOUT, 'col', 1792*2048)][:'E' in o.get('col', '')] + PF('E'))
    F.loader(S_WS, U_, S_WOUT, 0, 1792*2048, lambda f: k.sync([(5, 4, 5, 4)], 16, mid=f), st=19)
    k.stamp_out(); k(f's_endpgm\n{k.lab("cc")}:')
    res_compute(C, 7, S_X, 0, S_WS, H_, repack(k))
    k.srd(16, S_WS, Z2, 8*MB)
    D.csetup()
    k(f's_mov_b32 s48, 0xbdd2d3e8\ns_mov_b32 s49, s48\ns_cmp_eq_u32 s31, 1\ns_cbranch_scc1 {k.lab("d1")}')
    win_compute(D, 0); k(f's_branch {k.lab("ce")}\n{k.lab("d1")}:'); win_compute(D, 1)
    k(f'{k.lab("ce")}:')
    sp_compute(E)
    res_compute(F, 19, S_WS, H_, S_OUT, 0, False)
    if o.get('ts'): k('s_waitcnt vmcnt(0)'); k.stamp(22)
    k.stamp_out(); k(f'{k.lab("end")}:\ns_endpgm')
    return k
```

```python
from core import *
from util import *
from k012 import unpack
ZS, TB, QS, SY, WSG = 122880, 151552, 98304, 155648, 122880
WO = [16, 17, 18, 19, 24, 25, 26]

def PF(c): return [x for x, w in zip(((S_WSP, 0, 4*MB), (S_WSP, 4*MB, 4*MB), (S_WOUT, 0, 1792*2048)), OPT.get('pf', 'DCD')) if w == c]

def attn(k):
    S0, OA, LA, QF, KF, ON = 32, 176, 192, 208, 216, 248
    k(f'''s_lshr_b32 s16, s3, 2
    s_and_b32 s17, s3, 3
    s_lshl_b32 s6, s5, 1
    s_add_u32 s18, s6, s16
    s_lshl_b32 s19, s18, 17
    s_lshl_b32 s26, s4, 2
    v_add_u32 v4, 2, v1
    v_subrev_u32 v4, s4, v4
    v_cmp_le_u32 s[56:57], 3, v4
    s_add_u32 s26, s26, s17
    v_and_b32 v1, 31, v0
    v_lshrrev_b32 v2, 5, v0''')
    k.srd(12, S_WS, QKV+32*131072, 131072, 19); k.srd(20, S_WS, QKV+64*131072, 131072, 19); k.srd(40, S_WS, O_, 4*MB)
    k('s_mov_b32 s24, 0xf149f2ca\nv_mov_b32 v6, s24\nv_lshlrev_b32 v7, 2, v2\nv_sub_u32 v7, v1, v7')
    k('s_cmp_lt_u32 s26, 8\ns_cselect_b32 s25, s24, 0\nv_mov_b32 v8, s25')
    for i in range(16):
        kl = 8*(i//4) + i % 4
        k(f'v_cmp_le_i32 vcc, {kl}, v7\ns_nop 1\nv_cndmask_b32 v{S0+128+i}, v6, 0, vcc\nv_cndmask_b32 v{S0+i}, v8, v6, vcc')
    for b in range(1, 8):
        k(f's_add_u32 s27, s26, {b}\ns_cmp_lt_u32 s27, 8\ns_cselect_b32 s27, s24, 0')
        for i in range(16): k(f'v_mov_b32 v{S0+16*b+i}, s27')
    for i in range(32): k(f'v_mov_b32 v{OA+i}, 0')
    for i in range(4): k(f'v_mov_b32 v{ON+i}, 0x3f803f80')
    k(f'''v_lshrrev_b32 v9, 2, v1
    v_and_b32 v9, 3, v9
    v_xor_b32 v9, v9, v2
    v_lshlrev_b32 v9, 4, v9
    v_lshl_add_u32 v9, v1, 6, v9
    s_mul_i32 s27, s16, 24576
    s_lshl_b32 s6, s17, 11
    s_add_u32 s7, s6, s27
    v_add_u32 v9, s7, v9
    v_xor_b32 v10, 32, v9
    v_bfe_u32 v11, v0, 2, 2
    v_lshl_add_u32 v11, v2, 2, v11
    v_lshlrev_b32 v11, 6, v11
    v_bfe_u32 v12, v0, 4, 1
    v_lshl_add_u32 v11, v12, 5, v11
    v_and_b32 v12, 3, v0
    v_lshl_add_u32 v11, v12, 3, v11
    s_add_u32 s7, s7, 49152
    v_add_u32 v11, s7, v11
    v_lshlrev_b32 v12, 6, v1
    v_lshl_add_u32 v12, v2, 4, v12
    s_lshl_b32 s28, s3, 11
    s_add_u32 s28, s28, {QS}
    v_add_u32 v12, s28, v12
    s_lshl_b32 s6, s17, 10
    s_add_u32 s27, s27, s6
    s_lshl_b32 s7, s4, 13
    s_add_u32 s6, s6, s7
    s_sub_u32 s6, s6, 16384
    v_lshlrev_b32 v4, 4, v0
    v_and_b32 v5, 48, v0
    v_xor_b32 v5, v4, v5
    v_add_u32 v4, s6, v4
    v_add_u32 v5, s6, v5''')
    k.sync([(0, 5, 4, 4)], 14, 's[56:57]'); k.stamp(4)
    for i in range(6): k(f's_add_u32 m0, s27, {4096*i}\ns_nop 0\nbuffer_load_dwordx4 v5, s[12:15], 0 offen sc1 lds\nv_add_u32 v5, 4096, v5')
    for i in range(6): k(f's_add_u32 m0, s27, {49152+4096*i}\ns_nop 0\nbuffer_load_dwordx4 v4, s[20:23], 0 offen sc1 lds\nv_add_u32 v4, 4096, v4')
    k('s_waitcnt vmcnt(6)\ns_barrier'); k.stamp(5)
    k(f'ds_read_b128 {vr(QF,4)}, v12\nds_read_b128 {vr(QF+4,4)}, v12 offset:32')
    def kread(b): k(f'ds_read_b128 {vr(KF+8*(b%4),4)}, v9 offset:{2048*b}\nds_read_b128 {vr(KF+8*(b%4)+4,4)}, v10 offset:{2048*b}')
    def vmax(b):
        s = S0+16*b
        if b == 0: k(f'v_max_f32 v13, v{s}, v{s+1}')
        for i in range(1 if b == 0 else 0, 8): k(f'v_max3_f32 v13, v{s+2*i}, v{s+2*i+1}, v13')
    for b in range(3): kread(b)
    for b in range(9):
        if b+3 < 9: kread(b+3)
        k(f's_waitcnt lgkmcnt({2*min(3, 8-b)})')
        for t in range(2): k(f'v_mfma_f32_32x32x16_bf16 {vr(S0+16*b,16)}, {vr(KF+8*(b%4)+4*t,4)}, {vr(QF+4*t,4)}, {vr(S0+16*b,16)}')
        if b == 2: k('s_nop 1')
        if b >= 2: vmax(b-2)
    k('s_waitcnt vmcnt(0)\ns_barrier')
    k.stamp(28); k('s_cmp_lt_u32 s3, 4\ns_cbranch_scc1 L_nst')
    for i in range(7): k(f's_add_u32 m0, s32, {WSG+4096*i}\ns_nop 0\nbuffer_load_dwordx4 v{WO[i]}, s[44:47], s33 offen lds')
    if 'T' in OPT.get('col', ''): k.prefetch(S_WO, 'col', 2*MB); k('v_mov_b32 v251, v250')
    k('L_nst:')
    for x in PF('T'): k.prefetch(*x, 8, 3)
    k.stamp(29)
    def vread(b):
        for t in range(2):
            for j in range(2): k(f'ds_read_b64_tr_b16 {vr(KF+8*(b%4)+4*t+2*j,2)}, v11 offset:{2048*b+1024*t+512*j}')
    vread(0); vread(1); k('s_nop 3'); vmax(7); vmax(8)
    k(f'''v_mov_b32 v14, v13
    s_mov_b32 s24, 0x3e8293ee
    s_mov_b32 s25, s24
    v_permlane32_swap_b32 v14, v13
    v_max_f32 v13, v13, v14
    v_mul_f32_e64 v14, s24, -v13
    v_mov_b32 v15, v14''')
    for b in range(9):
        s = S0+16*b
        if b+2 < 9: vread(b+2)
        for i in range(8): k(f'v_pk_fma_f32 {vr(s+2*i,2)}, {vr(s+2*i,2)}, s[24:25], v[14:15]')
        for i in range(16): k(f'v_exp_f32 v{s+i}, v{s+i}')
        for i in range(8): k(f'v_cvt_pk_bf16_f32 v{s+i}, v{s+2*i}, v{s+2*i+1}')
        k(f's_waitcnt lgkmcnt({4*min(2, 8-b)})\ns_nop 0')
        for t in range(2):
            k(f'v_mfma_f32_32x32x16_bf16 {vr(OA,16)}, {vr(KF+8*(b%4)+4*t,4)}, {vr(s+4*t,4)}, {vr(OA,16)}')
            k(f'v_mfma_f32_32x32x16_bf16 {vr(LA,16)}, {vr(ON,4)}, {vr(s+4*t,4)}, {vr(LA,16)}')
    k(f'''v_lshrrev_b32 v4, 4, v1
    v_lshl_add_u32 v4, v4, 2, v2
    v_and_b32 v1, 15, v0
    v_lshl_add_u32 v4, v4, 4, v1
    v_lshlrev_b32 v4, 4, v4
    s_lshl_b32 s6, s4, 18
    s_lshl_b32 s7, s18, 13
    s_add_u32 s6, s6, s7
    s_lshl_b32 s7, s17, 11
    s_add_u32 s6, s6, s7
    v_lshrrev_b32 v2, 4, v0
    s_nop 7
    v_rcp_f32 v13, v{LA}
    s_nop 0''')
    for i in range(16): k(f'v_mul_f32 v{OA+i}, v{OA+i}, v13')
    for i in range(8): k(f'v_cvt_pk_bf16_f32 v{16+i}, v{OA+2*i}, v{OA+2*i+1}')
    k(f'''s_nop 1
    v_permlane32_swap_b32 v16, v18
    v_permlane32_swap_b32 v17, v19
    v_permlane32_swap_b32 v20, v22
    v_permlane32_swap_b32 v21, v23
    buffer_store_dwordx4 v[16:19], v4, s[40:43], s6 offen sc1
    buffer_store_dwordx4 v[20:23], v4, s[40:43], s6 offen offset:512 sc1''')
    k.stamp(6); k('s_waitcnt vmcnt(2)\ns_barrier'); k.arrive(1)

def repack(k):
    k.srd(8, S_WS, WP, 7*MB); k.srd(12, S_WS, CS2, 16*16*896)
    k(f'''v_lshrrev_b32 v5, 2, v1
    v_lshl_add_u32 v5, v2, 3, v5
    v_mul_u32_u24 v5, 448, v5
    v_and_b32 v6, 3, v0
    v_lshl_add_u32 v5, v6, 3, v5
    v_and_b32 v6, 1, v2
    v_xor_b32 v6, s3, v6
    v_lshl_add_u32 v5, v6, 5, v5
    v_add_u32 v5, {WSG}, v5''')
    for j in range(4):
        for kk in range(2):
            for h in range(2): k(f'ds_read_b64_tr_b16 {vr(128+8*j+4*kk+2*h,2)}, v5 offset:{(32*kk+4*h)*448+128*j}')
    k(f'''s_lshl_b32 s6, s5, 4
    s_add_u32 s6, s6, s4
    s_mul_i32 s6, s6, 28672
    s_lshl_b32 s7, s3, 10
    s_add_u32 s26, s6, s7
    s_lshl_b32 s7, s4, 4
    s_add_u32 s7, s7, s5
    s_mul_i32 s7, s7, 896
    s_lshl_b32 s27, s3, 6
    s_add_u32 s27, s7, s27
    v_lshlrev_b32 v176, 4, v0
    v_add_u32 v177, 14336, v176
    v_lshlrev_b32 v178, 2, v1
    s_waitcnt lgkmcnt(0)''')
    for j in range(4):
        for kk in range(2): k(f'v_mfma_f32_16x16x32_bf16 {vr(160+4*j,4)}, v[248:251], {vr(128+8*j+4*kk,4)}, {vr(160+4*j,4) if kk else 0}')
    k = K('tmp', 0, 0, 0, 0); k('s_nop 4')
    k.spin(*((12, 1) if OPT.get('rp', 'cnt') == 'go' else (8, 9)), 179)
    for j in range(4):
        if j == 3: k('s_cmp_ge_u32 s3, 2\ns_cbranch_scc1 L_rp')
        k(f'''buffer_store_dwordx4 {vr(128+8*j,4)}, v176, s[8:11], s26 offen sc1
        buffer_store_dwordx4 {vr(132+8*j,4)}, v177, s[8:11], s26 offen sc1
        s_add_u32 s26, s26, 4096
        s_mov_b64 exec, 0xffff
        buffer_store_dword v{160+4*j}, v178, s[12:15], s27 offen offset:{256*j} sc1
        s_mov_b64 exec, -1''')
    k('L_rp:')
    return '\n'.join(k.L)

def res_compute(g, st, res_ptr, res_off, out_ptr, out_off, stats):
    k = g.k; R = g.FREE; sc = ' sc1' if stats else ''
    k.srd(16, res_ptr, res_off, 4*MB); k.srd(40, out_ptr, out_off, 4*MB); k.srd(44, S_WS, ST, 32768)
    g.pg16(13)
    k(f'''v_lshl_add_u32 v13, v1, 11, v13
    v_add_u32 v14, 32768, v13
    s_lshl_b32 s38, s4, 18
    s_lshl_b32 s6, s3, 16
    s_add_u32 s38, s38, s6
    s_lshl_b32 s6, s5, 7
    s_add_u32 s38, s38, s6
    s_lshl_b32 s50, s4, 18
    s_lshl_b32 s6, s5, 14
    s_add_u32 s50, s50, s6
    s_lshl_b32 s6, s3, 11
    s_add_u32 s50, s50, s6
    s_add_u32 s51, s50, 8192''')
    g.pkaddr(15)
    rm = lambda mt, p, sr: f'v{13+mt}, s[{sr}:{sr+3}], s38 offen offset:{64*p}'
    pk = lambda mt, p, sr: f'v15, s[{sr}:{sr+3}], s{50+p} offen offset:{1024*mt} sc1'
    ld, so = (rm, pk) if stats else (pk, rm)
    for mt in range(2):
        for p in range(2): k(f'buffer_load_dwordx4 {vr(R+8*mt+4*p,4)}, {ld(mt, p, 16)}')
    g.csetup()
    if stats: k(stats)
    g.mainloop(st, extra=[f's_cmp_lg_u32 s36, {g.nk-7}\ns_cbranch_scc1 L_nc\ns_waitcnt vmcnt(0)\nL_nc:'] if stats else [])
    if not stats and OPT.get('fl', 1): k('v_lshrrev_b32 v4, 3, v1\nv_mul_u32_u24 v4, 16320, v4\nv_sub_u32 v13, v13, v4\nv_sub_u32 v14, v14, v4\ns_add_u32 s39, s38, 16384')
    k('s_waitcnt vmcnt(0)')
    T = g.FX
    for mt in range(2):
        for p in range(2):
            r = R+8*mt+4*p; c = g.acc(mt, 2*p); d = g.FY + 8*mt + 4*p
            k(f'v_permlane16_swap_b32 v{r}, v{r+2}\nv_permlane16_swap_b32 v{r+1}, v{r+3}')
            unpack(k, r, 4, T)
            for i in range(4): k(f'v_pk_add_f32 {vr(c+2*i,2)}, {vr(c+2*i,2)}, {vr(T+2*i,2)}')
            g.pack_pair(c, c+4, d)
            if stats or not OPT.get('fl', 1): k(f'buffer_store_dwordx4 {vr(d,4)}, {so(mt, p, 40)}' + ('' if stats else ' nt'))
        if not stats and OPT.get('fl', 1):
            for i in range(4): k(f'v_mov_b32 v{T+i}, v{d-4+i}')
            for i in range(4): k(f'v_mov_b32_dpp v{d-4+i}, v{d+i} row_ror:8 row_mask:0xf bank_mask:0xc')
            for i in range(4): k(f'v_mov_b32_dpp v{d+i}, v{T+i} row_ror:8 row_mask:0xf bank_mask:0x3')
            k(f'buffer_store_dwordx4 {vr(d-4,4)}, v{13+mt}, s[40:43], s38 offen nt\nbuffer_store_dwordx4 {vr(d,4)}, v{13+mt}, s[40:43], s39 offen nt')
    if not stats: return
    for mt in range(2):
        unpack(k, g.FY + 8*mt, 8, T)
        k(f'v_pk_mul_f32 {vr(T+16,2)}, {vr(T,2)}, {vr(T,2)}')
        for i in range(1, 8): k(f'v_pk_fma_f32 {vr(T+16,2)}, {vr(T+2*i,2)}, {vr(T+2*i,2)}, {vr(T+16,2)}\nv_pk_add_f32 {vr(T,2)}, {vr(T,2)}, {vr(T+2*i,2)}')
        k(f'v_add_f32 v{4+mt}, v{T}, v{T+1}\nv_add_f32 v{6+mt}, v{T+16}, v{T+17}')
    k(f'''v_lshrrev_b32 v8, 5, v0
    v_lshl_add_u32 v8, v8, 4, v1
    v_permlane32_swap_b32 v4, v5
    v_permlane32_swap_b32 v6, v7
    v_add_f32 v4, v4, v5
    v_add_f32 v6, v6, v7
    v_and_b32 v9, 1, v2
    v_lshlrev_b32 v9, 2, v9
    v_permlane16_swap_b32 v4, v6
    v_lshl_add_u32 v8, v8, 3, v9
    v_add_f32 v4, v4, v6
    s_lshl_b32 s6, s4, 10
    s_lshl_b32 s7, s3, 8
    s_add_u32 s6, s6, s7
    buffer_atomic_add_f32 v4, v8, s[44:47], s6 offen''')
    k.stamp(27); k.arrive(2)

def win_compute(g, wc):
    k = g.k; nz = 4 - wc; Z = list(range(nz)); Y = list(range(nz, 7))
    g.mainloop(10, Z, 'ab'[wc])
    F = g.FX; R4 = F; N4 = F+16; CT = F+32; T = F+40; PQ = F+44; RR = F+76; CC = F+84
    k(f'''s_lshl_b32 s6, s30, 8
    s_add_u32 s6, s6, {TB}
    v_lshl_add_u32 v4, v2, 4, s6
    v_lshl_add_u32 v14, v1, 2, s6
    s_mov_b32 s6, {TB+1024+448*wc}
    v_lshl_add_u32 v5, v1, 2, s6
    v_lshl_add_u32 v15, v2, 4, s6
    v_mov_b32 v10, 0xc0135761
    v_mov_b32 v11, v10''')
    def rd_rn(o):
        for mt in range(4): k(f'ds_read_b128 {vr(R4+4*mt,4)}, v4 offset:{64*mt}\nds_read_b128 {vr(N4+4*mt,4)}, v4 offset:{o+64*mt}')
    rd_rn(512)
    for nt in Z: k(f'ds_read_b32 v{CT+2*nt}, v5 offset:{64*nt}')
    k('s_waitcnt lgkmcnt(0)')
    for mt in range(4): k(f'ds_read_b32 v{RR+2*mt}, v14 offset:{64*mt}\nds_read_b32 v{RR+2*mt+1}, v14 offset:{512+64*mt}')
    for nt in Y: k(f'ds_read_b128 {vr(CC+4*(nt-nz),4)}, v15 offset:{64*nt}')
    for mt in range(4):
        P, Q = PQ + 8*mt, PQ + 8*mt + 4
        for nt in Z:
            c = g.acc(mt, nt)
            for i in (0, 2): k(f'v_pk_mul_f32 {vr(c+i,2)}, {vr(c+i,2)}, {vr(R4+4*mt+i,2)}')
            for i in (0, 2): k(f'v_pk_fma_f32 {vr(c+i,2)}, {vr(N4+4*mt+i,2)}, {vr(CT+2*nt,2)}, {vr(c+i,2)} op_sel_hi:[1,0,1]')
            gelu4(k, c, T)
            for i in (0, 2):
                if nt == 0: k(f'v_mov_b32 v{P+i}, v{c+i}\nv_mov_b32 v{P+i+1}, v{c+i+1}\nv_pk_mul_f32 {vr(Q+i,2)}, {vr(c+i,2)}, {vr(c+i,2)}')
                else: k(f'v_pk_add_f32 {vr(P+i,2)}, {vr(P+i,2)}, {vr(c+i,2)}\nv_pk_fma_f32 {vr(Q+i,2)}, {vr(c+i,2)}, {vr(c+i,2)}, {vr(Q+i,2)}')
    k(f'''v_bfe_u32 v6, v0, 3, 1
    v_lshlrev_b32 v6, 2, v6
    v_add_u32 v6, v6, v2
    v_lshlrev_b32 v6, 1, v6
    v_bfe_u32 v7, v0, 2, 1
    v_add_u32 v6, v6, v7
    v_lshlrev_b32 v6, 2, v6
    v_and_b32 v7, 3, v0
    v_add_lshl_u32 v6, v6, v7, 2
    s_mov_b32 s56, 0xaaaaaaaa
    s_mov_b32 s57, s56
    s_mov_b32 s58, 0xcccccccc
    s_mov_b32 s59, s58
    s_lshl_b32 s38, s4, 10
    s_lshl_b32 s7, s30, 9
    s_add_u32 s38, s38, s7
    s_add_u32 s38, s38, 16384''')
    dpp = lambda d, a, m, bm: k(f'v_add_f32_dpp v{d}, v{a}, v{a} {m} row_mask:0xf bank_mask:{bm}')
    for i in range(2):
        a, b = PQ + 16*i, PQ + 16*i + 8
        for j in range(8): dpp(a+j, a+j, 'row_ror:8', '0x3')
        for j in range(8): dpp(a+j, b+j, 'row_ror:8', '0xc')
        four = [a, a+1, a+4, a+5]
        for j in four: dpp(j, j, 'row_shl:4', '0x5')
        for j in four: dpp(j, j+2, 'row_shr:4', '0xa')
        for j in four: dpp(j, j, 'quad_perm:[2,3,0,1]', '0xf')
        for j in four: dpp(j, j, 'quad_perm:[1,0,3,2]', '0xf')
        k(f'''v_cndmask_b32 v{a}, v{a}, v{a+4}, s[56:57]
        v_cndmask_b32 v{a+1}, v{a+1}, v{a+5}, s[56:57]
        v_cndmask_b32 v{a}, v{a}, v{a+1}, s[58:59]
        buffer_atomic_add_f32 v{a}, v6, s[44:47], s38 offen offset:{256*i}''')
    k(f's_mul_i32 s6, s30, {4*3584}\ns_add_u32 s6, s6, {ZS}\nv_lshl_add_u32 v14, v0, 3, s6\ns_waitcnt lgkmcnt(0)')
    def z1(mt):
        r = vr(RR+2*mt, 2)
        for nt in Y:
            c = g.acc(mt, nt)
            for i in (0, 2): k(f'v_pk_mul_f32 {vr(c+i,2)}, {vr(c+i,2)}, {r} op_sel_hi:[1,0]')
            for i in (0, 2): k(f'v_pk_fma_f32 {vr(c+i,2)}, {vr(CC+4*(nt-nz)+i,2)}, {r}, {vr(c+i,2)} op_sel:[0,1,0]')
            gelu4(k, c, T)
            k(f'v_cvt_pk_bf16_f32 v{c}, v{c}, v{c+1}\nv_cvt_pk_bf16_f32 v{c+1}, v{c+2}, v{c+3}')
            k(f'ds_write_b64 v14, {vr(c,2)} offset:{(mt*7 + nt - nz + 3*wc)*512}')
    k.stamp(13); za = OPT.get('za', 0)
    for i in range(3):
        if i == za: k.arrive(3)
        z1(i)
    k.spin(28, 1, 6); k.stamp(14)
    k(f'''v_lshlrev_b32 v7, 3, v0
    buffer_load_dwordx2 v[8:9], v7, s[44:47], s38 offen sc1
    s_lshl_b32 s7, s3, 9
    s_add_u32 s7, s7, {TB+2048}
    v_lshl_add_u32 v6, v0, 2, s7
    v_lshl_add_u32 v4, v2, 4, s7''')
    g.pkaddr(12)
    k(f'''    s_lshl_b32 s39, s5, 6
    s_lshl_b32 s7, s4, 2
    s_add_u32 s39, s39, s7
    s_lshl_b32 s7, s30, 1
    s_add_u32 s39, s39, s7
    s_mul_i32 s39, s39, 7168
    s_add_u32 s39, s39, {4096*wc}''')
    z1(3)
    k('s_waitcnt vmcnt(0)'); rstats(k, 8, 9, '0x3a124925')
    k('ds_write_b32 v6, v8\nds_write_b32 v6, v9 offset:256\ns_waitcnt lgkmcnt(0)')
    rd_rn(256); k('s_waitcnt lgkmcnt(0)')
    n = 0
    for i in range(2):
        for nt in Z:
            for mt in (2*i, 2*i+1):
                c = g.acc(mt, nt)
                for j in (0, 2): k(f'v_pk_fma_f32 {vr(c+j,2)}, {vr(c+j,2)}, {vr(R4+4*mt+j,2)}, {vr(N4+4*mt+j,2)}')
            d = PQ + 4*n; n += 1
            g.pack_pair(g.acc(2*i, nt), g.acc(2*i+1, nt), d)
            k(f'buffer_store_dwordx4 {vr(d,4)}, v12, s[16:19], s39 offen offset:{nt*1024} sc1')
        k('s_add_u32 s39, s39, 7168')
    k.stamp(15); k.arrive(4)

def win_pre(k):
    def pre(ph):
        if ph == 0:
            k.srd(44, S_WS, ST, 32768); k.srd(40, S_WS, CS2, 16*16*896)
            k(f'''s_lshl_b32 s6, s29, 6
            v_add_u32 v24, s6, v0
            v_and_b32 v25, 127, v24
            v_lshlrev_b32 v23, 3, v25
            s_lshl_b32 s6, s4, 10
            buffer_load_dwordx2 v[26:27], v23, s[44:47], s6 offen sc1
            v_min_u32 v22, 223, v24
            v_lshlrev_b32 v22, 2, v22
            s_mul_i32 s6, s5, 896''')
            for i in range(16): k(f'buffer_load_dword v{28+i}, v22, s[40:43], s6 offen sc1\ns_add_u32 s6, s6, 14336')
        else:
            rstats(k, 26, 27, '0x3a800000')
            for i in range(1, 16): k(f'v_add_f32 v28, v28, v{28+i}')
            k(f'''s_mov_b32 s6, {TB}
            v_lshl_add_u32 v25, v25, 2, s6
            v_lshl_add_u32 v24, v24, 2, s6
            ds_write_b32 v25, v26
            ds_write_b32 v25, v27 offset:512
            ds_write_b32 v24, v28 offset:1024
            s_waitcnt lgkmcnt(0)''')
    return pre

def sp_compute(g):
    k = g.k; ZR = g.FREE; BB = ZR + 28
    k.srd(40, S_WS, U_, 2048*3584); k.srd(44, S_BSP, 0, 4096)
    k(f's_lshl_b32 s38, s4, 3\ns_lshl_b32 s7, s3, 1\ns_add_u32 s38, s38, s7\ns_lshl_b32 s7, s38, 5\nv_lshlrev_b32 v15, 1, v1')
    for mt in range(2): k(f'buffer_load_ushort v{BB+2*mt}, v15, s[44:47], s7 offen offset:{32*mt}')
    g.csetup(); g.mainloop(16)
    k(f's_mul_i32 s6, s3, 7168\ns_add_u32 s6, s6, {ZS}\nv_lshl_add_u32 v6, v0, 3, s6')
    for i in range(14): k(f'ds_read_b64 {vr(ZR+2*i,2)}, v6 offset:{512*i}')
    g.pkaddr(4)
    k(f'''v_and_b32 v5, 1, v2
    v_lshrrev_b32 v3, 1, v2
    v_lshl_add_u32 v5, v5, 2, v3
    v_lshl_add_u32 v5, v5, 4, v1
    v_lshlrev_b32 v5, 4, v5
    s_mul_i32 s6, s4, {128*3584}
    s_lshr_b32 s7, s5, 1
    s_mul_i32 s7, s7, {7*8192}
    s_add_u32 s6, s6, s7
    s_lshl_b32 s7, s3, 11
    s_add_u32 s6, s6, s7
    s_waitcnt vmcnt(0) lgkmcnt(0)
    v_lshlrev_b32 v{BB}, 16, v{BB}
    v_lshlrev_b32 v{BB+2}, 16, v{BB+2}
    s_bitcmp1_b32 s5, 0
    s_cbranch_scc1 {g.lab('odd')}''')
    T = g.FX
    def prep(mt, nt):
        c = g.acc(mt, nt)
        unpack(k, ZR+14*mt+2*nt, 2, T)
        for i in (0, 2): k(f'v_pk_add_f32 {vr(c+i,2)}, {vr(c+i,2)}, {vr(BB+2*mt,2)} op_sel_hi:[1,0]')
        for i in (0, 2): k(f'v_pk_mul_f32 {vr(c+i,2)}, {vr(c+i,2)}, {vr(T+i,2)}')
        return c
    for odd in range(2):
        d = T + 4
        for i in range(3):
            k(f's_add_u32 s7, s6, {(4*odd+i)*8192}')
            for mt in range(2):
                g.pack_pair(prep(mt, 2*i+odd), prep(mt, 2*i+odd+1), d)
                k(f'buffer_store_dwordx4 {vr(d,4)}, v4, s[40:43], s7 offen offset:{1024*mt} sc1'); d += 4
        g.pack_pair(prep(0, 6-6*odd), prep(1, 6-6*odd), d)
        k(f's_add_u32 s7, s6, {3*8192}\nbuffer_store_dwordx4 {vr(d,4)}, v5, s[40:43], s7 offen offset:{512*odd} sc1')
        k(f's_branch {g.lab("ex")}\n{g.lab("odd")}:' if odd == 0 else f'{g.lab("ex")}:')
    k.stamp(26); k.arrive(5)

def k_mega():
    k = K('sequential_preLN__sliding_block__mixer_gmlp__prompt', 256, 512, 163840, 256); o = OPT
    Q = Gemm(k, 'q', 192, 1024, 2048, 6144, 2, 2, o.get('qNS', 3), 'tr', 128, ((0, 0), (4, 1984), (8, 3968), (12, -128), (16, 1856), (20, 3840)))
    C = Gemm(k, 'c', 64, 1024, 2048, 2048, 4, 1, 6, 'tr', afrag=True)
    D = Gemm(k, 'd', 224, 1024, 2048, 0, 2, 2, 3, 'frag', afrag=True)
    DT = Gemm(k, 'dt', 224, 1024, 2048, 7168, 2, 2, 3, 'tr', 224, ((0, 3584), (8, -128), (14, 3488), (20, -224)), True)
    E = Gemm(k, 'e', 112, 2048, 4096, 0, 4, 1, 4, 'frag')
    F = Gemm(k, 'f', 64, 1792, 3584, 2048, 4, 1, 6, 'tr', afrag=True)
    xr = o.get('xr', 4); lx = xr.bit_length()-1; nxc = 16//(32//xr); lc = nxc.bit_length()-1
    k(f'''s_cmp_ge_u32 s2, 256
    s_cbranch_scc1 {k.lab('end')}
    s_load_dwordx16 s[64:79], s[0:1], 0
    s_load_dwordx4 s[80:83], s[0:1], 64
    s_load_dwordx2 s[84:85], s[0:1], 80
    v_lshrrev_b32 v1, 6, v0
    v_and_b32 v0, 63, v0
    v_readfirstlane_b32 s3, v1
    s_and_b32 s6, s2, 7
    s_lshr_b32 s7, s2, 3
    s_lshr_b32 s4, s6, {lc}
    s_lshl_b32 s4, s4, {lx}
    s_and_b32 s28, s7, {xr-1}
    s_add_u32 s4, s4, s28
    s_and_b32 s5, s6, {nxc-1}
    s_mul_i32 s5, s5, {32//xr}
    s_lshr_b32 s28, s7, {lx}
    s_add_u32 s5, s5, s28
    s_xor_b32 s5, s5, {o.get('x5', 0)}
    v_and_b32 v1, 15, v0
    v_lshrrev_b32 v2, 4, v0
    s_mov_b32 s37, 1000000
    v_mov_b32 v254, {SY}
    s_sub_u32 s29, s3, 4
    s_waitcnt lgkmcnt(0)''')
    k.srd(60, S_WS, FL, 65536)
    k(f's_cmp_lt_u32 s3, 4\ns_cbranch_scc1 {k.lab("cq")}')
    k.stamp(0)
    def qtail():
        lb = k.uid('dbg')
        k.srd(44, S_WS, LS, 16384); k.srd(40, S_WS, CS, 16*16*768)
        k(f'''s_lshl_b32 s7, s4, 7
        s_add_u32 s7, s7, s5
        s_lshl_b32 s7, s7, 2
        s_add_u32 s7, s7, {7*8192}
        {lb}:
        buffer_load_dword v16, off, s[60:63], s7 sc1
        s_sub_u32 s37, s37, 1
        s_cselect_b32 s37, 0, s37
        s_cbranch_scc1 {lb}x
        s_waitcnt vmcnt(0)
        v_readfirstlane_b32 s6, v16
        s_cmp_lg_u32 s6, 1
        s_cbranch_scc1 {lb}
        {lb}x:
        s_lshl_b32 s6, s29, 6
        v_add_u32 v24, s6, v0
        v_and_b32 v25, 127, v24
        v_lshlrev_b32 v23, 3, v25
        s_lshl_b32 s6, s4, 10
        buffer_load_dwordx2 v[26:27], v23, s[44:47], s6 offen sc1
        v_min_u32 v22, 191, v24
        v_lshlrev_b32 v22, 2, v22
        s_mul_i32 s6, s5, 768''')
        for i in range(16): k(f'buffer_load_dword v{28+i}, v22, s[40:43], s6 offen sc1\ns_add_u32 s6, s6, {16*768}')
        return 17
    Q.loader(S_X, 0, S_WQKV, 0, 1024*6144, tail=qtail, pf=((S_WO, 0, 2*MB),))
    k('v_lshl_add_u32 v3, v1, 2, v254\nv_mov_b32 v4, 0\nds_write_b32 v3, v4\ns_waitcnt vmcnt(1)')
    for i in range(1, 16): k(f'v_add_f32 v28, v28, v{28+i}')
    k(f'''s_mov_b32 s6, {TB}
    v_lshl_add_u32 v25, v25, 2, s6
    v_lshl_add_u32 v24, v24, 2, s6
    ds_write_b32 v25, v26
    ds_write_b32 v25, v27 offset:512
    ds_write_b32 v24, v28 offset:1024
    s_mul_i32 s33, s4, {64*7168}
    s_lshl_b32 s32, s29, 10
    s_lshl_b32 s6, s2, 2
    s_add_u32 s6, s6, s29
    s_lshl_b32 s6, s6, 11
    v_lshlrev_b32 v4, 5, v0
    s_waitcnt lgkmcnt(0)
    s_barrier''')
    DT.woffs(WO); k(f's_mul_i32 s6, s5, 224'); k.srd(44, S_WIN, 0, 1024*7168, 6); k('s_sub_u32 s46, s46, s6')
    k(f's_branch {k.lab("attn")}\n{k.lab("cq")}:')
    k.stamp(0)
    F0 = Q.FX; W0, X0, A8 = 192, 224, 240
    Q.csetup()
    k.srd(8, S_WQKV, 0, 1024*6144); k.srd(12, S_WS, CS, 16*16*768); k.srd(20, S_X, 0, 4*MB); k.srd(24, S_WS, ST, 114688)
    k(f'''s_lshl_b32 s28, s4, 4
    s_add_u32 s28, s28, s5
    s_lshl_b32 s6, s28, 2
    s_add_u32 s41, s6, s3
    s_lshl_b32 s6, s41, 12
    v_lshlrev_b32 v10, 4, v0''')
    for i in range(4): k(f'buffer_load_dwordx4 {vr(X0+4*i,4)}, v10, s[20:23], s6 offen offset:{1024*i}')
    k(f'''s_lshl_b32 s41, s41, 4
    s_add_u32 s41, s41, {LS-ST}
    s_mul_i32 s40, s28, 768
    s_lshl_b32 s7, s3, 8
    s_add_u32 s40, s40, s7
    s_cmp_eq_u32 s3, 3
    s_cbranch_scc1 L_xs
    v_lshrrev_b32 v10, 3, v0
    v_and_b32 v11, 7, v0
    v_lshlrev_b32 v11, 4, v11
    s_mov_b32 s6, 6144
    v_mad_u32_u24 v10, v10, s6, v11
    s_mul_i32 s6, s4, {64*6144}
    s_lshl_b32 s7, s3, 11
    s_add_u32 s6, s6, s7
    s_lshl_b32 s7, s5, 7
    s_add_u32 s6, s6, s7''')
    for i in range(8): k(f'buffer_load_dwordx4 {vr(W0+4*i,4)}, v10, s[8:11], s6 offen\ns_add_u32 s6, s6, {8*6144}')
    k(f'''s_branch L_qm
    L_xs:
    s_lshl_b32 s28, s28, 6
    v_lshlrev_b32 v10, 14, v2
    v_lshl_add_u32 v10, v1, 2, v10
    v_lshlrev_b32 v11, 13, v0
    s_lshl_b32 s6, s4, 9
    s_lshl_b32 s7, s5, 2
    s_add_u32 s6, s6, s7
    s_mov_b32 exec_hi, 0
    buffer_store_dword v16, v10, s[24:27], s28 offen sc1
    s_mov_b64 exec, 0xff
    buffer_store_dword v16, v11, s[60:63], s6 offen sc1
    s_mov_b64 exec, -1
    L_qm:
    v_mov_b32 v15, 1
    s_cmp_eq_u32 s3, 0
    s_cselect_b32 s39, {Q.nk-o.get('pi', 0)-3}, -1''')
    p = K('tmp', 0, 0, 0, 0)
    nq = (p.prefetch(S_WQKV, 'col', 6*MB, wv=3) if 'Q' in o.get('col', '') else 0) + (p.prefetch(S_X, 'row', 4*MB, wv=3) if 'X' in o.get('col', '') else 0)
    p(f's_waitcnt vmcnt({nq})')
    if 'q' in o.get('col', ''): p.prefetch(S_WQKV, 'col', 6*MB, wv=3)
    p('s_mov_b32 s6, 0x3f803f80')
    for j in range(16):
        for q in range(2):
            a = A8 + 2*(j//8) + q; x = f'v{X0+j}'
            p(f'v_dot2_f32_bf16 v{a}, {x}, {x if q else "s6"}, {f"v{a}" if j % 8 else 0}')
    p('s_nop 2')
    def allsum(n, T, rors):
        for r in rors:
            for j in range(n): p(f'v_add_f32_dpp v{A8+j}, v{A8+j}, v{A8+j} row_ror:{r} row_mask:0xf bank_mask:0xf')
        for q in (16, 32):
            for j in range(n): p(f'v_mov_b32 v{T+j}, v{A8+j}')
            for j in range(n): p(f'v_permlane{q}_swap_b32 v{T+j}, v{A8+j}')
            for j in range(n): p(f'v_add_f32 v{A8+j}, v{A8+j}, v{T+j}')
    allsum(4, A8+4, (8, 4, 2, 1))
    rstats(p, A8, A8+1, '0x3a800000'); rstats(p, A8+2, A8+3, '0x3a800000')
    p(f's_mov_b64 exec, 1\nbuffer_store_dwordx4 {vr(A8,4)}, off, s[24:27], s41 sc1\ns_mov_b64 exec, -1\ns_cmp_eq_u32 s3, 3\ns_cbranch_scc1 L_np')
    for i in range(8):
        unpack(p, W0+4*i, 4, X0 if i else A8)
        if i:
            for j in range(4): p(f'v_pk_add_f32 {vr(A8+2*j,2)}, {vr(A8+2*j,2)}, {vr(X0+2*j,2)}')
    allsum(8, X0, (8,))
    p(f'''v_lshlrev_b32 v10, 5, v0
    s_mov_b64 exec, 0xff
    buffer_store_dwordx4 {vr(A8,4)}, v10, s[12:15], s40 offen sc1
    buffer_store_dwordx4 {vr(A8+4,4)}, v10, s[12:15], s40 offen offset:16 sc1
    s_mov_b64 exec, -1
    L_np:''')
    k.srd(52, 82, 0, 256); k.srd(16, S_WS, QKV, 12*MB); k.srd(44, S_WIN, 0, 64); k('s_mov_b32 s33, 0')
    k(f'v_lshlrev_b32 v13, 9, v2\nv_lshl_add_u32 v13, v1, 2, v13\nv_mov_b32 v14, 1\ns_sub_u32 s38, s39, 2\ns_mov_b32 s50, {7*8192}\ns_mov_b32 s51, {7*8192+4096}')
    k('\n'.join(p.L))
    Q.mainloop(1, extra=[f's_cmp_lg_u32 s36, {Q.nk-o.get("pi", 0)-2}\ns_cbranch_scc1 L_nw\ns_waitcnt vmcnt(0)\nL_nw:',
        's_cmp_lg_u32 s36, s39\ns_cbranch_scc1 L_na\ns_mov_b64 exec, 1\nbuffer_atomic_add v15, off, s[52:55], 0 sc0\ns_mov_b64 exec, -1\nL_na:',
        's_cmp_lg_u32 s36, s38\ns_cbranch_scc1 L_nb\ns_waitcnt vmcnt(0)\nv_readfirstlane_b32 s6, v15\ns_and_b32 s6, s6, 255\ns_cmp_lg_u32 s6, 255\ns_cbranch_scc1 L_nb\n'
        + ''.join(f'buffer_store_dword v14, v13, s[60:63], s{50+i//2} offen offset:{2048*(i%2)} sc1\n' for i in range(4)) + 'L_nb:'])
    RR, CC = F0+48, F0+56
    k(f'''s_barrier
    s_lshl_b32 s6, s30, 8
    s_add_u32 s6, s6, {TB}
    v_lshl_add_u32 v6, v1, 2, s6
    s_lshl_b32 s6, s31, 7
    s_add_u32 s6, s6, {TB+1024}
    v_lshl_add_u32 v7, v2, 4, s6''')
    for mt in range(4): k(f'ds_read_b32 v{RR+2*mt}, v6 offset:{64*mt}\nds_read_b32 v{RR+2*mt+1}, v6 offset:{512+64*mt}')
    for nt in range(6): k(f'ds_read_b128 {vr(CC+4*nt,4)}, v7 offset:{256*(nt//2)+64*(nt%2)}')
    k.stamp(23); Q.pg16(4)
    k(f'''v_lshl_add_u32 v4, v1, 6, v4
    s_lshl_b32 s6, s5, 1
    s_add_u32 s6, s6, s31
    s_lshl_b32 s6, s6, 17
    s_lshl_b32 s7, s4, 13
    s_add_u32 s6, s6, s7
    s_lshl_b32 s7, s30, 12
    s_add_u32 s6, s6, s7
    s_lshl_b32 s28, s31, 13
    s_add_u32 s7, s7, s28
    s_add_u32 s7, s7, {QS}
    v_add_u32 v5, s7, v4
    s_waitcnt lgkmcnt(0)''')
    n = 0
    for p in (1, 2, 0):
        k(f's_add_u32 s6, s6, {32*131072}')
        for mt in range(4):
            d = Q.FX + 4*n; n += 1; c = Q.acc(mt, 2*p); r = vr(RR+2*mt, 2)
            for i in range(0, 8, 2): k(f'v_pk_mul_f32 {vr(c+i,2)}, {vr(c+i,2)}, {r} op_sel_hi:[1,0]')
            for i in range(0, 8, 2): k(f'v_pk_fma_f32 {vr(c+i,2)}, {vr(CC+8*p+i,2)}, {r}, {vr(c+i,2)} op_sel:[0,1,0]')
            Q.pack_pair(Q.acc(mt, 2*p), Q.acc(mt, 2*p+1), d)
            k(f'buffer_store_dwordx4 {vr(d,4)}, v4, s[16:19], s6 offen offset:{mt*1024} sc1' if p else f'ds_write_b128 v5, {vr(d,4)} offset:{mt*1024}')
    k.stamp(24); k.arrive(0); k.stamp(25)
    k(f'{k.lab("attn")}:')
    attn(k)
    k(f's_cmp_lt_u32 s3, 4\ns_cbranch_scc1 {k.lab("cc")}')
    C.loader(S_WS, O_, S_WO, 0, 2*MB, lambda f: k.sync([(1, 4, 5, 8)], 16, mid=f), st=7, pf=PF('C'), pub=(6, 5, 4))
    D.loader(S_WS, H_, S_WS, WP, 0, lambda f: k.sync([(2, 4, 5, 4)], 16, mid=f), pre=win_pre(k), st=10, pf=[(S_WSP, (4096, 4, 128*4096, 32*4096, 128, 3), 8*MB)][:'D' in o.get('own', 'DE')] + PF('D'), dep0=lambda: k.sync([(6, 5, 4, 0)], 16))
    E.loader(S_WSP, 0, S_WS, Z2, 0, lambda f: k.sync([(3, 4, 5, 4), (4, 5, 4, 4)], 16, mid=f), depA=False, st=16, pf=[(S_WOUT, (2048, 5, 128, 32*2048, 128*2048, 3), 1792*2048)][:'E' in o.get('own', 'DE')] + [(S_WOUT, 'col', 1792*2048)][:'E' in o.get('col', '')] + PF('E'))
    F.loader(S_WS, U_, S_WOUT, 0, 1792*2048, lambda f: k.sync([(5, 4, 5, 4)], 16, mid=f), st=19)
    k.stamp_out(); k(f's_endpgm\n{k.lab("cc")}:')
    res_compute(C, 7, S_X, 0, S_WS, H_, repack(k))
    k.srd(16, S_WS, Z2, 8*MB)
    D.csetup()
    k(f's_mov_b32 s48, 0xbdd2d3e8\ns_mov_b32 s49, s48\ns_cmp_eq_u32 s31, 1\ns_cbranch_scc1 {k.lab("d1")}')
    win_compute(D, 0); k(f's_branch {k.lab("ce")}\n{k.lab("d1")}:'); win_compute(D, 1)
    k(f'{k.lab("ce")}:')
    sp_compute(E)
    res_compute(F, 19, S_WS, H_, S_OUT, 0, False)
    if o.get('ts'): k('s_waitcnt vmcnt(0)'); k.stamp(22)
    k.stamp_out(); k(f'{k.lab("end")}:\ns_endpgm')
    return k
```

```python
from core import *
from util import *
from k012 import unpack
ZS, TB, QS, SY, WSG = 122880, 151552, 98304, 155648, 122880
WO = [16, 17, 18, 19, 24, 25, 26]

def PF(c): return [x for x, w in zip(((S_WSP, 0, 4*MB), (S_WSP, 4*MB, 4*MB), (S_WOUT, 0, 1792*2048)), OPT.get('pf', 'DCD')) if w == c]

def attn(k):
    S0, OA, LA, QF, KF, ON = 32, 176, 192, 208, 216, 248
    k(f'''s_lshr_b32 s16, s3, 2
    s_and_b32 s17, s3, 3
    s_lshl_b32 s6, s5, 1
    s_add_u32 s18, s6, s16
    s_lshl_b32 s19, s18, 17
    s_lshl_b32 s26, s4, 2
    v_add_u32 v4, 2, v1
    v_subrev_u32 v4, s4, v4
    v_cmp_le_u32 s[56:57], 3, v4
    s_add_u32 s26, s26, s17
    v_and_b32 v1, 31, v0
    v_lshrrev_b32 v2, 5, v0''')
    k.srd(12, S_WS, QKV+32*131072, 131072, 19); k.srd(20, S_WS, QKV+64*131072, 131072, 19); k.srd(40, S_WS, O_, 4*MB)
    k('s_mov_b32 s24, 0xf149f2ca\nv_mov_b32 v6, s24\nv_lshlrev_b32 v7, 2, v2\nv_sub_u32 v7, v1, v7')
    k('s_cmp_lt_u32 s26, 8\ns_cselect_b32 s25, s24, 0\nv_mov_b32 v8, s25')
    for i in range(16):
        kl = 8*(i//4) + i % 4
        k(f'v_cmp_le_i32 vcc, {kl}, v7\ns_nop 1\nv_cndmask_b32 v{S0+128+i}, v6, 0, vcc\nv_cndmask_b32 v{S0+i}, v8, v6, vcc')
    for b in range(1, 8):
        k(f's_add_u32 s27, s26, {b}\ns_cmp_lt_u32 s27, 8\ns_cselect_b32 s27, s24, 0')
        for i in range(16): k(f'v_mov_b32 v{S0+16*b+i}, s27')
    for i in range(32): k(f'v_mov_b32 v{OA+i}, 0')
    for i in range(4): k(f'v_mov_b32 v{ON+i}, 0x3f803f80')
    k(f'''v_lshrrev_b32 v9, 2, v1
    v_and_b32 v9, 3, v9
    v_xor_b32 v9, v9, v2
    v_lshlrev_b32 v9, 4, v9
    v_lshl_add_u32 v9, v1, 6, v9
    s_mul_i32 s27, s16, 24576
    s_lshl_b32 s6, s17, 11
    s_add_u32 s7, s6, s27
    v_add_u32 v9, s7, v9
    v_xor_b32 v10, 32, v9
    v_bfe_u32 v11, v0, 2, 2
    v_lshl_add_u32 v11, v2, 2, v11
    v_lshlrev_b32 v11, 6, v11
    v_bfe_u32 v12, v0, 4, 1
    v_lshl_add_u32 v11, v12, 5, v11
    v_and_b32 v12, 3, v0
    v_lshl_add_u32 v11, v12, 3, v11
    s_add_u32 s7, s7, 49152
    v_add_u32 v11, s7, v11
    v_lshlrev_b32 v12, 6, v1
    v_lshl_add_u32 v12, v2, 4, v12
    s_lshl_b32 s28, s3, 11
    s_add_u32 s28, s28, {QS}
    v_add_u32 v12, s28, v12
    s_lshl_b32 s6, s17, 10
    s_add_u32 s27, s27, s6
    s_lshl_b32 s7, s4, 13
    s_add_u32 s6, s6, s7
    s_sub_u32 s6, s6, 16384
    v_lshlrev_b32 v4, 4, v0
    v_and_b32 v5, 48, v0
    v_xor_b32 v5, v4, v5
    v_add_u32 v4, s6, v4
    v_add_u32 v5, s6, v5''')
    k.sync([(0, 5, 4, 4)], 14, 's[56:57]'); k.stamp(4)
    for i in range(6): k(f's_add_u32 m0, s27, {4096*i}\ns_nop 0\nbuffer_load_dwordx4 v5, s[12:15], 0 offen sc1 lds\nv_add_u32 v5, 4096, v5')
    for i in range(6): k(f's_add_u32 m0, s27, {49152+4096*i}\ns_nop 0\nbuffer_load_dwordx4 v4, s[20:23], 0 offen sc1 lds\nv_add_u32 v4, 4096, v4')
    k('s_waitcnt vmcnt(6)\ns_barrier'); k.stamp(5)
    k(f'ds_read_b128 {vr(QF,4)}, v12\nds_read_b128 {vr(QF+4,4)}, v12 offset:32')
    def kread(b): k(f'ds_read_b128 {vr(KF+8*(b%4),4)}, v9 offset:{2048*b}\nds_read_b128 {vr(KF+8*(b%4)+4,4)}, v10 offset:{2048*b}')
    def vmax(b):
        s = S0+16*b
        if b == 0: k(f'v_max_f32 v13, v{s}, v{s+1}')
        for i in range(1 if b == 0 else 0, 8): k(f'v_max3_f32 v13, v{s+2*i}, v{s+2*i+1}, v13')
    for b in range(3): kread(b)
    for b in range(9):
        if b+3 < 9: kread(b+3)
        k(f's_waitcnt lgkmcnt({2*min(3, 8-b)})')
        for t in range(2): k(f'v_mfma_f32_32x32x16_bf16 {vr(S0+16*b,16)}, {vr(KF+8*(b%4)+4*t,4)}, {vr(QF+4*t,4)}, {vr(S0+16*b,16)}')
        if b == 2: k('s_nop 1')
        if b >= 2: vmax(b-2)
    k('s_waitcnt vmcnt(0)\ns_barrier')
    k.stamp(28); k('s_cmp_lt_u32 s3, 4\ns_cbranch_scc1 L_nst')
    for i in range(7): k(f's_add_u32 m0, s32, {WSG+4096*i}\ns_nop 0\nbuffer_load_dwordx4 v{WO[i]}, s[44:47], s33 offen lds')
    if 'T' in OPT.get('col', 'cfeQ'): k.prefetch(S_WO, 'col', 2*MB); k('v_mov_b32 v251, v250')
    k('L_nst:')
    for x in PF('T'): k.prefetch(*x, 8, 3)
    k.stamp(29)
    def vread(b):
        for t in range(2):
            for j in range(2): k(f'ds_read_b64_tr_b16 {vr(KF+8*(b%4)+4*t+2*j,2)}, v11 offset:{2048*b+1024*t+512*j}')
    vread(0); vread(1); k('s_nop 3'); vmax(7); vmax(8)
    k(f'''v_mov_b32 v14, v13
    s_mov_b32 s24, 0x3e8293ee
    s_mov_b32 s25, s24
    v_permlane32_swap_b32 v14, v13
    v_max_f32 v13, v13, v14
    v_mul_f32_e64 v14, s24, -v13
    v_mov_b32 v15, v14''')
    for b in range(9):
        s = S0+16*b
        if b+2 < 9: vread(b+2)
        for i in range(8): k(f'v_pk_fma_f32 {vr(s+2*i,2)}, {vr(s+2*i,2)}, s[24:25], v[14:15]')
        for i in range(16): k(f'v_exp_f32 v{s+i}, v{s+i}')
        for i in range(8): k(f'v_cvt_pk_bf16_f32 v{s+i}, v{s+2*i}, v{s+2*i+1}')
        k(f's_waitcnt lgkmcnt({4*min(2, 8-b)})\ns_nop 0')
        for t in range(2):
            k(f'v_mfma_f32_32x32x16_bf16 {vr(OA,16)}, {vr(KF+8*(b%4)+4*t,4)}, {vr(s+4*t,4)}, {vr(OA,16)}')
            k(f'v_mfma_f32_32x32x16_bf16 {vr(LA,16)}, {vr(ON,4)}, {vr(s+4*t,4)}, {vr(LA,16)}')
    k(f'''v_lshrrev_b32 v4, 4, v1
    v_lshl_add_u32 v4, v4, 2, v2
    v_and_b32 v1, 15, v0
    v_lshl_add_u32 v4, v4, 4, v1
    v_lshlrev_b32 v4, 4, v4
    s_lshl_b32 s6, s4, 18
    s_lshl_b32 s7, s18, 13
    s_add_u32 s6, s6, s7
    s_lshl_b32 s7, s17, 11
    s_add_u32 s6, s6, s7
    v_lshrrev_b32 v2, 4, v0
    s_nop 7
    v_rcp_f32 v13, v{LA}
    s_nop 0''')
    for i in range(16): k(f'v_mul_f32 v{OA+i}, v{OA+i}, v13')
    for i in range(8): k(f'v_cvt_pk_bf16_f32 v{16+i}, v{OA+2*i}, v{OA+2*i+1}')
    k(f'''s_nop 1
    v_permlane32_swap_b32 v16, v18
    v_permlane32_swap_b32 v17, v19
    v_permlane32_swap_b32 v20, v22
    v_permlane32_swap_b32 v21, v23
    buffer_store_dwordx4 v[16:19], v4, s[40:43], s6 offen sc1
    buffer_store_dwordx4 v[20:23], v4, s[40:43], s6 offen offset:512 sc1''')
    k.stamp(6); k('s_waitcnt vmcnt(2)\ns_barrier'); k.arrive(1)

def repack(k):
    k.srd(8, S_WS, WP, 7*MB); k.srd(12, S_WS, CS2, 16*16*896)
    k(f'''v_lshrrev_b32 v5, 2, v1
    v_lshl_add_u32 v5, v2, 3, v5
    v_mul_u32_u24 v5, 448, v5
    v_and_b32 v6, 3, v0
    v_lshl_add_u32 v5, v6, 3, v5
    v_and_b32 v6, 1, v2
    v_xor_b32 v6, s3, v6
    v_lshl_add_u32 v5, v6, 5, v5
    v_add_u32 v5, {WSG}, v5''')
    for j in range(4):
        for kk in range(2):
            for h in range(2): k(f'ds_read_b64_tr_b16 {vr(128+8*j+4*kk+2*h,2)}, v5 offset:{(32*kk+4*h)*448+128*j}')
    k(f'''s_lshl_b32 s6, s5, 4
    s_add_u32 s6, s6, s4
    s_mul_i32 s6, s6, 28672
    s_lshl_b32 s7, s3, 10
    s_add_u32 s26, s6, s7
    s_lshl_b32 s7, s4, 4
    s_add_u32 s7, s7, s5
    s_mul_i32 s7, s7, 896
    s_lshl_b32 s27, s3, 6
    s_add_u32 s27, s7, s27
    v_lshlrev_b32 v176, 4, v0
    v_add_u32 v177, 14336, v176
    v_lshlrev_b32 v178, 2, v1
    s_waitcnt lgkmcnt(0)''')
    for j in range(4):
        for kk in range(2): k(f'v_mfma_f32_16x16x32_bf16 {vr(160+4*j,4)}, v[248:251], {vr(128+8*j+4*kk,4)}, {vr(160+4*j,4) if kk else 0}')
    k = K('tmp', 0, 0, 0, 0); k('s_nop 4')
    k.spin(*((12, 1) if OPT.get('rp', 'cnt') == 'go' else (8, 9)), 179)
    for j in range(4):
        if j == 3: k('s_cmp_ge_u32 s3, 2\ns_cbranch_scc1 L_rp')
        k(f'''buffer_store_dwordx4 {vr(128+8*j,4)}, v176, s[8:11], s26 offen sc1
        buffer_store_dwordx4 {vr(132+8*j,4)}, v177, s[8:11], s26 offen sc1
        s_add_u32 s26, s26, 4096
        s_mov_b64 exec, 0xffff
        buffer_store_dword v{160+4*j}, v178, s[12:15], s27 offen offset:{256*j} sc1
        s_mov_b64 exec, -1''')
    k('L_rp:')
    return '\n'.join(k.L)

def res_compute(g, st, res_ptr, res_off, out_ptr, out_off, stats):
    k = g.k; R = g.FREE; sc = ' sc1' if stats else ''
    k.srd(16, res_ptr, res_off, 4*MB); k.srd(40, out_ptr, out_off, 4*MB); k.srd(44, S_WS, ST, 32768)
    g.pg16(13)
    k(f'''v_lshl_add_u32 v13, v1, 11, v13
    v_add_u32 v14, 32768, v13
    s_lshl_b32 s38, s4, 18
    s_lshl_b32 s6, s3, 16
    s_add_u32 s38, s38, s6
    s_lshl_b32 s6, s5, 7
    s_add_u32 s38, s38, s6
    s_lshl_b32 s50, s4, 18
    s_lshl_b32 s6, s5, 14
    s_add_u32 s50, s50, s6
    s_lshl_b32 s6, s3, 11
    s_add_u32 s50, s50, s6
    s_add_u32 s51, s50, 8192''')
    g.pkaddr(15)
    rm = lambda mt, p, sr: f'v{13+mt}, s[{sr}:{sr+3}], s38 offen offset:{64*p}'
    pk = lambda mt, p, sr: f'v15, s[{sr}:{sr+3}], s{50+p} offen offset:{1024*mt} sc1'
    ld, so = (rm, pk) if stats else (pk, rm)
    for mt in range(2):
        for p in range(2): k(f'buffer_load_dwordx4 {vr(R+8*mt+4*p,4)}, {ld(mt, p, 16)}')
    g.csetup()
    if stats: k(stats)
    g.mainloop(st, extra=[f's_cmp_lg_u32 s36, {g.nk-7}\ns_cbranch_scc1 L_nc\ns_waitcnt vmcnt(0)\nL_nc:'] if stats else [])
    if not stats and OPT.get('fl', 1): k('v_lshrrev_b32 v4, 3, v1\nv_mul_u32_u24 v4, 16320, v4\nv_sub_u32 v13, v13, v4\nv_sub_u32 v14, v14, v4\ns_add_u32 s39, s38, 16384')
    k('s_waitcnt vmcnt(0)')
    T = g.FX
    for mt in range(2):
        for p in range(2):
            r = R+8*mt+4*p; c = g.acc(mt, 2*p); d = g.FY + 8*mt + 4*p
            k(f'v_permlane16_swap_b32 v{r}, v{r+2}\nv_permlane16_swap_b32 v{r+1}, v{r+3}')
            unpack(k, r, 4, T)
            for i in range(4): k(f'v_pk_add_f32 {vr(c+2*i,2)}, {vr(c+2*i,2)}, {vr(T+2*i,2)}')
            g.pack_pair(c, c+4, d)
            if stats or not OPT.get('fl', 1): k(f'buffer_store_dwordx4 {vr(d,4)}, {so(mt, p, 40)}' + ('' if stats else ' nt'))
        if not stats and OPT.get('fl', 1):
            for i in range(4): k(f'v_mov_b32 v{T+i}, v{d-4+i}')
            for i in range(4): k(f'v_mov_b32_dpp v{d-4+i}, v{d+i} row_ror:8 row_mask:0xf bank_mask:0xc')
            for i in range(4): k(f'v_mov_b32_dpp v{d+i}, v{T+i} row_ror:8 row_mask:0xf bank_mask:0x3')
            k(f'buffer_store_dwordx4 {vr(d-4,4)}, v{13+mt}, s[40:43], s38 offen nt\nbuffer_store_dwordx4 {vr(d,4)}, v{13+mt}, s[40:43], s39 offen nt')
    if not stats: return
    for mt in range(2):
        unpack(k, g.FY + 8*mt, 8, T)
        k(f'v_pk_mul_f32 {vr(T+16,2)}, {vr(T,2)}, {vr(T,2)}')
        for i in range(1, 8): k(f'v_pk_fma_f32 {vr(T+16,2)}, {vr(T+2*i,2)}, {vr(T+2*i,2)}, {vr(T+16,2)}\nv_pk_add_f32 {vr(T,2)}, {vr(T,2)}, {vr(T+2*i,2)}')
        k(f'v_add_f32 v{4+mt}, v{T}, v{T+1}\nv_add_f32 v{6+mt}, v{T+16}, v{T+17}')
    k(f'''v_lshrrev_b32 v8, 5, v0
    v_lshl_add_u32 v8, v8, 4, v1
    v_permlane32_swap_b32 v4, v5
    v_permlane32_swap_b32 v6, v7
    v_add_f32 v4, v4, v5
    v_add_f32 v6, v6, v7
    v_and_b32 v9, 1, v2
    v_lshlrev_b32 v9, 2, v9
    v_permlane16_swap_b32 v4, v6
    v_lshl_add_u32 v8, v8, 3, v9
    v_add_f32 v4, v4, v6
    s_lshl_b32 s6, s4, 10
    s_lshl_b32 s7, s3, 8
    s_add_u32 s6, s6, s7
    buffer_atomic_add_f32 v4, v8, s[44:47], s6 offen''')
    k.stamp(27); k.arrive(2)

def win_compute(g, wc):
    k = g.k; nz = 4 - wc; Z = list(range(nz)); Y = list(range(nz, 7))
    g.mainloop(10, Z, 'ab'[wc])
    F = g.FX; R4 = F; N4 = F+16; CT = F+32; T = F+40; PQ = F+44; RR = F+76; CC = F+84
    k(f'''s_lshl_b32 s6, s30, 8
    s_add_u32 s6, s6, {TB}
    v_lshl_add_u32 v4, v2, 4, s6
    v_lshl_add_u32 v14, v1, 2, s6
    s_mov_b32 s6, {TB+1024+448*wc}
    v_lshl_add_u32 v5, v1, 2, s6
    v_lshl_add_u32 v15, v2, 4, s6
    v_mov_b32 v10, 0xc0135761
    v_mov_b32 v11, v10''')
    def rd_rn(o):
        for mt in range(4): k(f'ds_read_b128 {vr(R4+4*mt,4)}, v4 offset:{64*mt}\nds_read_b128 {vr(N4+4*mt,4)}, v4 offset:{o+64*mt}')
    rd_rn(512)
    for nt in Z: k(f'ds_read_b32 v{CT+2*nt}, v5 offset:{64*nt}')
    k('s_waitcnt lgkmcnt(0)')
    for mt in range(4): k(f'ds_read_b32 v{RR+2*mt}, v14 offset:{64*mt}\nds_read_b32 v{RR+2*mt+1}, v14 offset:{512+64*mt}')
    for nt in Y: k(f'ds_read_b128 {vr(CC+4*(nt-nz),4)}, v15 offset:{64*nt}')
    for mt in range(4):
        P, Q = PQ + 8*mt, PQ + 8*mt + 4
        for nt in Z:
            c = g.acc(mt, nt)
            for i in (0, 2): k(f'v_pk_mul_f32 {vr(c+i,2)}, {vr(c+i,2)}, {vr(R4+4*mt+i,2)}')
            for i in (0, 2): k(f'v_pk_fma_f32 {vr(c+i,2)}, {vr(N4+4*mt+i,2)}, {vr(CT+2*nt,2)}, {vr(c+i,2)} op_sel_hi:[1,0,1]')
            gelu4(k, c, T)
            for i in (0, 2):
                if nt == 0: k(f'v_mov_b32 v{P+i}, v{c+i}\nv_mov_b32 v{P+i+1}, v{c+i+1}\nv_pk_mul_f32 {vr(Q+i,2)}, {vr(c+i,2)}, {vr(c+i,2)}')
                else: k(f'v_pk_add_f32 {vr(P+i,2)}, {vr(P+i,2)}, {vr(c+i,2)}\nv_pk_fma_f32 {vr(Q+i,2)}, {vr(c+i,2)}, {vr(c+i,2)}, {vr(Q+i,2)}')
    k(f'''v_bfe_u32 v6, v0, 3, 1
    v_lshlrev_b32 v6, 2, v6
    v_add_u32 v6, v6, v2
    v_lshlrev_b32 v6, 1, v6
    v_bfe_u32 v7, v0, 2, 1
    v_add_u32 v6, v6, v7
    v_lshlrev_b32 v6, 2, v6
    v_and_b32 v7, 3, v0
    v_add_lshl_u32 v6, v6, v7, 2
    s_mov_b32 s56, 0xaaaaaaaa
    s_mov_b32 s57, s56
    s_mov_b32 s58, 0xcccccccc
    s_mov_b32 s59, s58
    s_lshl_b32 s38, s4, 10
    s_lshl_b32 s7, s30, 9
    s_add_u32 s38, s38, s7
    s_add_u32 s38, s38, 16384''')
    dpp = lambda d, a, m, bm: k(f'v_add_f32_dpp v{d}, v{a}, v{a} {m} row_mask:0xf bank_mask:{bm}')
    for i in range(2):
        a, b = PQ + 16*i, PQ + 16*i + 8
        for j in range(8): dpp(a+j, a+j, 'row_ror:8', '0x3')
        for j in range(8): dpp(a+j, b+j, 'row_ror:8', '0xc')
        four = [a, a+1, a+4, a+5]
        for j in four: dpp(j, j, 'row_shl:4', '0x5')
        for j in four: dpp(j, j+2, 'row_shr:4', '0xa')
        for j in four: dpp(j, j, 'quad_perm:[2,3,0,1]', '0xf')
        for j in four: dpp(j, j, 'quad_perm:[1,0,3,2]', '0xf')
        k(f'''v_cndmask_b32 v{a}, v{a}, v{a+4}, s[56:57]
        v_cndmask_b32 v{a+1}, v{a+1}, v{a+5}, s[56:57]
        v_cndmask_b32 v{a}, v{a}, v{a+1}, s[58:59]
        buffer_atomic_add_f32 v{a}, v6, s[44:47], s38 offen offset:{256*i}''')
    k(f's_mul_i32 s6, s30, {4*3584}\ns_add_u32 s6, s6, {ZS}\nv_lshl_add_u32 v14, v0, 3, s6\ns_waitcnt lgkmcnt(0)')
    def z1(mt):
        r = vr(RR+2*mt, 2)
        for nt in Y:
            c = g.acc(mt, nt)
            for i in (0, 2): k(f'v_pk_mul_f32 {vr(c+i,2)}, {vr(c+i,2)}, {r} op_sel_hi:[1,0]')
            for i in (0, 2): k(f'v_pk_fma_f32 {vr(c+i,2)}, {vr(CC+4*(nt-nz)+i,2)}, {r}, {vr(c+i,2)} op_sel:[0,1,0]')
            gelu4(k, c, T)
            k(f'v_cvt_pk_bf16_f32 v{c}, v{c}, v{c+1}\nv_cvt_pk_bf16_f32 v{c+1}, v{c+2}, v{c+3}')
            k(f'ds_write_b64 v14, {vr(c,2)} offset:{(mt*7 + nt - nz + 3*wc)*512}')
    k.stamp(13); za = OPT.get('za', 0)
    for i in range(3):
        if i == za: k.arrive(3)
        z1(i)
    k.spin(28, 1, 6); k.stamp(14)
    k(f'''v_lshlrev_b32 v7, 3, v0
    buffer_load_dwordx2 v[8:9], v7, s[44:47], s38 offen sc1
    s_lshl_b32 s7, s3, 9
    s_add_u32 s7, s7, {TB+2048}
    v_lshl_add_u32 v6, v0, 2, s7
    v_lshl_add_u32 v4, v2, 4, s7''')
    g.pkaddr(12)
    k(f'''    s_lshl_b32 s39, s5, 6
    s_lshl_b32 s7, s4, 2
    s_add_u32 s39, s39, s7
    s_lshl_b32 s7, s30, 1
    s_add_u32 s39, s39, s7
    s_mul_i32 s39, s39, 7168
    s_add_u32 s39, s39, {4096*wc}''')
    z1(3)
    k('s_waitcnt vmcnt(0)'); rstats(k, 8, 9, '0x3a124925')
    k('ds_write_b32 v6, v8\nds_write_b32 v6, v9 offset:256\ns_waitcnt lgkmcnt(0)')
    rd_rn(256); k('s_waitcnt lgkmcnt(0)')
    n = 0
    for i in range(2):
        for nt in Z:
            for mt in (2*i, 2*i+1):
                c = g.acc(mt, nt)
                for j in (0, 2): k(f'v_pk_fma_f32 {vr(c+j,2)}, {vr(c+j,2)}, {vr(R4+4*mt+j,2)}, {vr(N4+4*mt+j,2)}')
            d = PQ + 4*n; n += 1
            g.pack_pair(g.acc(2*i, nt), g.acc(2*i+1, nt), d)
            k(f'buffer_store_dwordx4 {vr(d,4)}, v12, s[16:19], s39 offen offset:{nt*1024} sc1')
        k('s_add_u32 s39, s39, 7168')
    k.stamp(15); k.arrive(4)

def win_pre(k):
    def pre(ph):
        if ph == 0:
            k.srd(44, S_WS, ST, 32768); k.srd(40, S_WS, CS2, 16*16*896)
            k(f'''s_lshl_b32 s6, s29, 6
            v_add_u32 v24, s6, v0
            v_and_b32 v25, 127, v24
            v_lshlrev_b32 v23, 3, v25
            s_lshl_b32 s6, s4, 10
            buffer_load_dwordx2 v[26:27], v23, s[44:47], s6 offen sc1
            v_min_u32 v22, 223, v24
            v_lshlrev_b32 v22, 2, v22
            s_mul_i32 s6, s5, 896''')
            for i in range(16): k(f'buffer_load_dword v{28+i}, v22, s[40:43], s6 offen sc1\ns_add_u32 s6, s6, 14336')
        else:
            rstats(k, 26, 27, '0x3a800000')
            for i in range(1, 16): k(f'v_add_f32 v28, v28, v{28+i}')
            k(f'''s_mov_b32 s6, {TB}
            v_lshl_add_u32 v25, v25, 2, s6
            v_lshl_add_u32 v24, v24, 2, s6
            ds_write_b32 v25, v26
            ds_write_b32 v25, v27 offset:512
            ds_write_b32 v24, v28 offset:1024
            s_waitcnt lgkmcnt(0)''')
    return pre

def sp_compute(g):
    k = g.k; ZR = g.FREE; BB = ZR + 28
    k.srd(40, S_WS, U_, 2048*3584); k.srd(44, S_BSP, 0, 4096)
    k(f's_lshl_b32 s38, s4, 3\ns_lshl_b32 s7, s3, 1\ns_add_u32 s38, s38, s7\ns_lshl_b32 s7, s38, 5\nv_lshlrev_b32 v15, 1, v1')
    for mt in range(2): k(f'buffer_load_ushort v{BB+2*mt}, v15, s[44:47], s7 offen offset:{32*mt}')
    g.csetup(); g.mainloop(16)
    k(f's_mul_i32 s6, s3, 7168\ns_add_u32 s6, s6, {ZS}\nv_lshl_add_u32 v6, v0, 3, s6')
    for i in range(14): k(f'ds_read_b64 {vr(ZR+2*i,2)}, v6 offset:{512*i}')
    g.pkaddr(4)
    k(f'''v_and_b32 v5, 1, v2
    v_lshrrev_b32 v3, 1, v2
    v_lshl_add_u32 v5, v5, 2, v3
    v_lshl_add_u32 v5, v5, 4, v1
    v_lshlrev_b32 v5, 4, v5
    s_mul_i32 s6, s4, {128*3584}
    s_lshr_b32 s7, s5, 1
    s_mul_i32 s7, s7, {7*8192}
    s_add_u32 s6, s6, s7
    s_lshl_b32 s7, s3, 11
    s_add_u32 s6, s6, s7
    s_waitcnt vmcnt(0) lgkmcnt(0)
    v_lshlrev_b32 v{BB}, 16, v{BB}
    v_lshlrev_b32 v{BB+2}, 16, v{BB+2}
    s_bitcmp1_b32 s5, 0
    s_cbranch_scc1 {g.lab('odd')}''')
    T = g.FX
    def prep(mt, nt):
        c = g.acc(mt, nt)
        unpack(k, ZR+14*mt+2*nt, 2, T)
        for i in (0, 2): k(f'v_pk_add_f32 {vr(c+i,2)}, {vr(c+i,2)}, {vr(BB+2*mt,2)} op_sel_hi:[1,0]')
        for i in (0, 2): k(f'v_pk_mul_f32 {vr(c+i,2)}, {vr(c+i,2)}, {vr(T+i,2)}')
        return c
    for odd in range(2):
        d = T + 4
        for i in range(3):
            k(f's_add_u32 s7, s6, {(4*odd+i)*8192}')
            for mt in range(2):
                g.pack_pair(prep(mt, 2*i+odd), prep(mt, 2*i+odd+1), d)
                k(f'buffer_store_dwordx4 {vr(d,4)}, v4, s[40:43], s7 offen offset:{1024*mt} sc1'); d += 4
        g.pack_pair(prep(0, 6-6*odd), prep(1, 6-6*odd), d)
        k(f's_add_u32 s7, s6, {3*8192}\nbuffer_store_dwordx4 {vr(d,4)}, v5, s[40:43], s7 offen offset:{512*odd} sc1')
        k(f's_branch {g.lab("ex")}\n{g.lab("odd")}:' if odd == 0 else f'{g.lab("ex")}:')
    k.stamp(26); k.arrive(5)

def k_mega():
    k = K('sequential_preLN__sliding_block__mixer_gmlp__prompt', 256, 512, 163840, 256); o = OPT
    Q = Gemm(k, 'q', 192, 1024, 2048, 6144, 2, 2, o.get('qNS', 3), 'tr', 128, ((0, 0), (4, 1984), (8, 3968), (12, -128), (16, 1856), (20, 3840)))
    C = Gemm(k, 'c', 64, 1024, 2048, 2048, 4, 1, 6, 'tr', afrag=True)
    D = Gemm(k, 'd', 224, 1024, 2048, 0, 2, 2, 3, 'frag', afrag=True)
    DT = Gemm(k, 'dt', 224, 1024, 2048, 7168, 2, 2, 3, 'tr', 224, ((0, 3584), (8, -128), (14, 3488), (20, -224)), True)
    E = Gemm(k, 'e', 112, 2048, 4096, 0, 4, 1, 4, 'frag')
    F = Gemm(k, 'f', 64, 1792, 3584, 2048, 4, 1, 6, 'tr', afrag=True)
    xr = o.get('xr', 4); lx = xr.bit_length()-1; nxc = 16//(32//xr); lc = nxc.bit_length()-1
    k(f'''s_cmp_ge_u32 s2, 256
    s_cbranch_scc1 {k.lab('end')}
    s_load_dwordx16 s[64:79], s[0:1], 0
    s_load_dwordx4 s[80:83], s[0:1], 64
    s_load_dwordx2 s[84:85], s[0:1], 80
    v_lshrrev_b32 v1, 6, v0
    v_and_b32 v0, 63, v0
    v_readfirstlane_b32 s3, v1
    s_and_b32 s6, s2, 7
    s_lshr_b32 s7, s2, 3
    s_lshr_b32 s4, s6, {lc}
    s_lshl_b32 s4, s4, {lx}
    s_and_b32 s28, s7, {xr-1}
    s_add_u32 s4, s4, s28
    s_and_b32 s5, s6, {nxc-1}
    s_mul_i32 s5, s5, {32//xr}
    s_lshr_b32 s28, s7, {lx}
    s_add_u32 s5, s5, s28
    s_xor_b32 s5, s5, {o.get('x5', 0)}
    v_and_b32 v1, 15, v0
    v_lshrrev_b32 v2, 4, v0
    s_mov_b32 s37, 1000000
    v_mov_b32 v254, {SY}
    s_sub_u32 s29, s3, 4
    s_waitcnt lgkmcnt(0)''')
    k.srd(60, S_WS, FL, 65536)
    k(f's_cmp_lt_u32 s3, 4\ns_cbranch_scc1 {k.lab("cq")}')
    k.stamp(0)
    def qtail():
        lb = k.uid('dbg')
        k.srd(44, S_WS, LS, 16384); k.srd(40, S_WS, CS, 16*16*768)
        k(f'''s_lshl_b32 s7, s4, 7
        s_add_u32 s7, s7, s5
        s_lshl_b32 s7, s7, 2
        s_add_u32 s7, s7, {7*8192}
        {lb}:
        buffer_load_dword v16, off, s[60:63], s7 sc1
        s_sub_u32 s37, s37, 1
        s_cselect_b32 s37, 0, s37
        s_cbranch_scc1 {lb}x
        s_waitcnt vmcnt(0)
        v_readfirstlane_b32 s6, v16
        s_cmp_lg_u32 s6, 1
        s_cbranch_scc1 {lb}
        {lb}x:
        s_lshl_b32 s6, s29, 6
        v_add_u32 v24, s6, v0
        v_and_b32 v25, 127, v24
        v_lshlrev_b32 v23, 3, v25
        s_lshl_b32 s6, s4, 10
        buffer_load_dwordx2 v[26:27], v23, s[44:47], s6 offen sc1
        v_min_u32 v22, 191, v24
        v_lshlrev_b32 v22, 2, v22
        s_mul_i32 s6, s5, 768''')
        for i in range(16): k(f'buffer_load_dword v{28+i}, v22, s[40:43], s6 offen sc1\ns_add_u32 s6, s6, {16*768}')
        return 17
    Q.loader(S_X, 0, S_WQKV, 0, 1024*6144, tail=qtail, pf=((S_WO, 0, 2*MB),))
    k('v_lshl_add_u32 v3, v1, 2, v254\nv_mov_b32 v4, 0\nds_write_b32 v3, v4\ns_waitcnt vmcnt(1)')
    for i in range(1, 16): k(f'v_add_f32 v28, v28, v{28+i}')
    k(f'''s_mov_b32 s6, {TB}
    v_lshl_add_u32 v25, v25, 2, s6
    v_lshl_add_u32 v24, v24, 2, s6
    ds_write_b32 v25, v26
    ds_write_b32 v25, v27 offset:512
    ds_write_b32 v24, v28 offset:1024
    s_mul_i32 s33, s4, {64*7168}
    s_lshl_b32 s32, s29, 10
    s_lshl_b32 s6, s2, 2
    s_add_u32 s6, s6, s29
    s_lshl_b32 s6, s6, 11
    v_lshlrev_b32 v4, 5, v0
    s_waitcnt lgkmcnt(0)
    s_barrier''')
    DT.woffs(WO); k(f's_mul_i32 s6, s5, 224'); k.srd(44, S_WIN, 0, 1024*7168, 6); k('s_sub_u32 s46, s46, s6')
    k(f's_branch {k.lab("attn")}\n{k.lab("cq")}:')
    k.stamp(0)
    F0 = Q.FX; W0, X0, A8 = 192, 224, 240
    Q.csetup()
    k.srd(8, S_WQKV, 0, 1024*6144); k.srd(12, S_WS, CS, 16*16*768); k.srd(20, S_X, 0, 4*MB); k.srd(24, S_WS, ST, 114688)
    k(f'''s_lshl_b32 s28, s4, 4
    s_add_u32 s28, s28, s5
    s_lshl_b32 s6, s28, 2
    s_add_u32 s41, s6, s3
    s_lshl_b32 s6, s41, 12
    v_lshlrev_b32 v10, 4, v0''')
    for i in range(4): k(f'buffer_load_dwordx4 {vr(X0+4*i,4)}, v10, s[20:23], s6 offen offset:{1024*i}')
    k(f'''s_lshl_b32 s41, s41, 4
    s_add_u32 s41, s41, {LS-ST}
    s_mul_i32 s40, s28, 768
    s_lshl_b32 s7, s3, 8
    s_add_u32 s40, s40, s7
    s_cmp_eq_u32 s3, 3
    s_cbranch_scc1 L_xs
    v_lshrrev_b32 v10, 3, v0
    v_and_b32 v11, 7, v0
    v_lshlrev_b32 v11, 4, v11
    s_mov_b32 s6, 6144
    v_mad_u32_u24 v10, v10, s6, v11
    s_mul_i32 s6, s4, {64*6144}
    s_lshl_b32 s7, s3, 11
    s_add_u32 s6, s6, s7
    s_lshl_b32 s7, s5, 7
    s_add_u32 s6, s6, s7''')
    for i in range(8): k(f'buffer_load_dwordx4 {vr(W0+4*i,4)}, v10, s[8:11], s6 offen\ns_add_u32 s6, s6, {8*6144}')
    k(f'''s_branch L_qm
    L_xs:
    s_lshl_b32 s28, s28, 6
    v_lshlrev_b32 v10, 14, v2
    v_lshl_add_u32 v10, v1, 2, v10
    v_lshlrev_b32 v11, 13, v0
    s_lshl_b32 s6, s4, 9
    s_lshl_b32 s7, s5, 2
    s_add_u32 s6, s6, s7
    s_mov_b32 exec_hi, 0
    buffer_store_dword v16, v10, s[24:27], s28 offen sc1
    s_mov_b64 exec, 0xff
    buffer_store_dword v16, v11, s[60:63], s6 offen sc1
    s_mov_b64 exec, -1
    L_qm:
    v_mov_b32 v15, 1
    s_cmp_eq_u32 s3, 0
    s_cselect_b32 s39, {Q.nk-o.get('pi', 0)-3}, -1''')
    p = K('tmp', 0, 0, 0, 0)
    nq = (p.prefetch(S_WQKV, 'col', 6*MB, wv=3) if 'Q' in o.get('col', 'cfeQ') else 0) + (p.prefetch(S_X, 'row', 4*MB, wv=3) if 'X' in o.get('col', 'cfeQ') else 0)
    p(f's_waitcnt vmcnt({nq})')
    if 'q' in o.get('col', 'cfeQ'): p.prefetch(S_WQKV, 'col', 6*MB, wv=3)
    p('s_mov_b32 s6, 0x3f803f80')
    for j in range(16):
        for q in range(2):
            a = A8 + 2*(j//8) + q; x = f'v{X0+j}'
            p(f'v_dot2_f32_bf16 v{a}, {x}, {x if q else "s6"}, {f"v{a}" if j % 8 else 0}')
    p('s_nop 2')
    def allsum(n, T, rors):
        for r in rors:
            for j in range(n): p(f'v_add_f32_dpp v{A8+j}, v{A8+j}, v{A8+j} row_ror:{r} row_mask:0xf bank_mask:0xf')
        for q in (16, 32):
            for j in range(n): p(f'v_mov_b32 v{T+j}, v{A8+j}')
            for j in range(n): p(f'v_permlane{q}_swap_b32 v{T+j}, v{A8+j}')
            for j in range(n): p(f'v_add_f32 v{A8+j}, v{A8+j}, v{T+j}')
    allsum(4, A8+4, (8, 4, 2, 1))
    rstats(p, A8, A8+1, '0x3a800000'); rstats(p, A8+2, A8+3, '0x3a800000')
    p(f's_mov_b64 exec, 1\nbuffer_store_dwordx4 {vr(A8,4)}, off, s[24:27], s41 sc1\ns_mov_b64 exec, -1\ns_cmp_eq_u32 s3, 3\ns_cbranch_scc1 L_np')
    for i in range(8):
        unpack(p, W0+4*i, 4, X0 if i else A8)
        if i:
            for j in range(4): p(f'v_pk_add_f32 {vr(A8+2*j,2)}, {vr(A8+2*j,2)}, {vr(X0+2*j,2)}')
    allsum(8, X0, (8,))
    p(f'''v_lshlrev_b32 v10, 5, v0
    s_mov_b64 exec, 0xff
    buffer_store_dwordx4 {vr(A8,4)}, v10, s[12:15], s40 offen sc1
    buffer_store_dwordx4 {vr(A8+4,4)}, v10, s[12:15], s40 offen offset:16 sc1
    s_mov_b64 exec, -1
    L_np:''')
    k.srd(52, 82, 0, 256); k.srd(16, S_WS, QKV, 12*MB); k.srd(44, S_WIN, 0, 64); k('s_mov_b32 s33, 0')
    k(f'v_lshlrev_b32 v13, 9, v2\nv_lshl_add_u32 v13, v1, 2, v13\nv_mov_b32 v14, 1\ns_sub_u32 s38, s39, 2\ns_mov_b32 s50, {7*8192}\ns_mov_b32 s51, {7*8192+4096}')
    k('\n'.join(p.L))
    Q.mainloop(1, extra=[f's_cmp_lg_u32 s36, {Q.nk-o.get("pi", 0)-2}\ns_cbranch_scc1 L_nw\ns_waitcnt vmcnt(0)\nL_nw:',
        's_cmp_lg_u32 s36, s39\ns_cbranch_scc1 L_na\ns_mov_b64 exec, 1\nbuffer_atomic_add v15, off, s[52:55], 0 sc0\ns_mov_b64 exec, -1\nL_na:',
        's_cmp_lg_u32 s36, s38\ns_cbranch_scc1 L_nb\ns_waitcnt vmcnt(0)\nv_readfirstlane_b32 s6, v15\ns_and_b32 s6, s6, 255\ns_cmp_lg_u32 s6, 255\ns_cbranch_scc1 L_nb\n'
        + ''.join(f'buffer_store_dword v14, v13, s[60:63], s{50+i//2} offen offset:{2048*(i%2)} sc1\n' for i in range(4)) + 'L_nb:'])
    RR, CC = F0+48, F0+56
    k(f'''s_barrier
    s_lshl_b32 s6, s30, 8
    s_add_u32 s6, s6, {TB}
    v_lshl_add_u32 v6, v1, 2, s6
    s_lshl_b32 s6, s31, 7
    s_add_u32 s6, s6, {TB+1024}
    v_lshl_add_u32 v7, v2, 4, s6''')
    for mt in range(4): k(f'ds_read_b32 v{RR+2*mt}, v6 offset:{64*mt}\nds_read_b32 v{RR+2*mt+1}, v6 offset:{512+64*mt}')
    for nt in range(6): k(f'ds_read_b128 {vr(CC+4*nt,4)}, v7 offset:{256*(nt//2)+64*(nt%2)}')
    k.stamp(23); Q.pg16(4)
    k(f'''v_lshl_add_u32 v4, v1, 6, v4
    s_lshl_b32 s6, s5, 1
    s_add_u32 s6, s6, s31
    s_lshl_b32 s6, s6, 17
    s_lshl_b32 s7, s4, 13
    s_add_u32 s6, s6, s7
    s_lshl_b32 s7, s30, 12
    s_add_u32 s6, s6, s7
    s_lshl_b32 s28, s31, 13
    s_add_u32 s7, s7, s28
    s_add_u32 s7, s7, {QS}
    v_add_u32 v5, s7, v4
    s_waitcnt lgkmcnt(0)''')
    n = 0
    for p in (1, 2, 0):
        k(f's_add_u32 s6, s6, {32*131072}')
        for mt in range(4):
            d = Q.FX + 4*n; n += 1; c = Q.acc(mt, 2*p); r = vr(RR+2*mt, 2)
            for i in range(0, 8, 2): k(f'v_pk_mul_f32 {vr(c+i,2)}, {vr(c+i,2)}, {r} op_sel_hi:[1,0]')
            for i in range(0, 8, 2): k(f'v_pk_fma_f32 {vr(c+i,2)}, {vr(CC+8*p+i,2)}, {r}, {vr(c+i,2)} op_sel:[0,1,0]')
            Q.pack_pair(Q.acc(mt, 2*p), Q.acc(mt, 2*p+1), d)
            k(f'buffer_store_dwordx4 {vr(d,4)}, v4, s[16:19], s6 offen offset:{mt*1024} sc1' if p else f'ds_write_b128 v5, {vr(d,4)} offset:{mt*1024}')
    k.stamp(24); k.arrive(0); k.stamp(25)
    k(f'{k.lab("attn")}:')
    attn(k)
    k(f's_cmp_lt_u32 s3, 4\ns_cbranch_scc1 {k.lab("cc")}')
    C.loader(S_WS, O_, S_WO, 0, 2*MB, lambda f: k.sync([(1, 4, 5, 8)], 16, mid=f), st=7, pf=PF('C'), pub=(6, 5, 4))
    D.loader(S_WS, H_, S_WS, WP, 0, lambda f: k.sync([(2, 4, 5, 4)], 16, mid=f), pre=win_pre(k), st=10, pf=[(S_WSP, (4096, 4, 128*4096, 32*4096, 128, 3), 8*MB)][:'D' in o.get('own', 'DE')] + PF('D'), dep0=lambda: k.sync([(6, 5, 4, 0)], 16))
    E.loader(S_WSP, 0, S_WS, Z2, 0, lambda f: k.sync([(3, 4, 5, 4), (4, 5, 4, 4)], 16, mid=f), depA=False, st=16, pf=[(S_WOUT, (2048, 5, 128, 32*2048, 128*2048, 3), 1792*2048)][:'E' in o.get('own', 'DE')] + [(S_WOUT, 'col', 1792*2048)][:'E' in o.get('col', 'cfeQ')] + PF('E'))
    F.loader(S_WS, U_, S_WOUT, 0, 1792*2048, lambda f: k.sync([(5, 4, 5, 4)], 16, mid=f), st=19)
    k.stamp_out(); k(f's_endpgm\n{k.lab("cc")}:')
    res_compute(C, 7, S_X, 0, S_WS, H_, repack(k))
    k.srd(16, S_WS, Z2, 8*MB)
    D.csetup()
    k(f's_mov_b32 s48, 0xbdd2d3e8\ns_mov_b32 s49, s48\ns_cmp_eq_u32 s31, 1\ns_cbranch_scc1 {k.lab("d1")}')
    win_compute(D, 0); k(f's_branch {k.lab("ce")}\n{k.lab("d1")}:'); win_compute(D, 1)
    k(f'{k.lab("ce")}:')
    sp_compute(E)
    res_compute(F, 19, S_WS, H_, S_OUT, 0, False)
    if o.get('ts'): k('s_waitcnt vmcnt(0)'); k.stamp(22)
    k.stamp_out(); k(f'{k.lab("end")}:\ns_endpgm')
    return k
```

```python
from core import *
from util import *
from k012 import unpack
ZS, TB, QS, SY, WSG = 122880, 151552, 98304, 155648, 122880
WO = [16, 17, 18, 19, 24, 25, 26]

def PF(c): return [x for x, w in zip(((S_WSP, 0, 4*MB), (S_WSP, 4*MB, 4*MB), (S_WOUT, 0, 1792*2048)), OPT.get('pf', 'DCD')) if w == c]

def attn(k):
    S0, OA, LA, QF, KF, ON = 32, 176, 192, 208, 216, 248
    k(f'''s_lshr_b32 s16, s3, 2
    s_and_b32 s17, s3, 3
    s_lshl_b32 s6, s5, 1
    s_add_u32 s18, s6, s16
    s_lshl_b32 s19, s18, 17
    s_lshl_b32 s26, s4, 2
    v_add_u32 v4, 2, v1
    v_subrev_u32 v4, s4, v4
    v_cmp_le_u32 s[56:57], 3, v4
    s_add_u32 s26, s26, s17
    v_and_b32 v1, 31, v0
    v_lshrrev_b32 v2, 5, v0''')
    k.srd(12, S_WS, QKV+32*131072, 131072, 19); k.srd(20, S_WS, QKV+64*131072, 131072, 19); k.srd(40, S_WS, O_, 4*MB)
    k('s_mov_b32 s24, 0xf149f2ca\nv_mov_b32 v6, s24\nv_lshlrev_b32 v7, 2, v2\nv_sub_u32 v7, v1, v7')
    k('s_cmp_lt_u32 s26, 8\ns_cselect_b32 s25, s24, 0\nv_mov_b32 v8, s25')
    for i in range(16):
        kl = 8*(i//4) + i % 4
        k(f'v_cmp_le_i32 vcc, {kl}, v7\ns_nop 1\nv_cndmask_b32 v{S0+128+i}, v6, 0, vcc\nv_cndmask_b32 v{S0+i}, v8, v6, vcc')
    for b in range(1, 8):
        k(f's_add_u32 s27, s26, {b}\ns_cmp_lt_u32 s27, 8\ns_cselect_b32 s27, s24, 0')
        for i in range(16): k(f'v_mov_b32 v{S0+16*b+i}, s27')
    for i in range(32): k(f'v_mov_b32 v{OA+i}, 0')
    for i in range(4): k(f'v_mov_b32 v{ON+i}, 0x3f803f80')
    k(f'''v_lshrrev_b32 v9, 2, v1
    v_and_b32 v9, 3, v9
    v_xor_b32 v9, v9, v2
    v_lshlrev_b32 v9, 4, v9
    v_lshl_add_u32 v9, v1, 6, v9
    s_mul_i32 s27, s16, 24576
    s_lshl_b32 s6, s17, 11
    s_add_u32 s7, s6, s27
    v_add_u32 v9, s7, v9
    v_xor_b32 v10, 32, v9
    v_bfe_u32 v11, v0, 2, 2
    v_lshl_add_u32 v11, v2, 2, v11
    v_lshlrev_b32 v11, 6, v11
    v_bfe_u32 v12, v0, 4, 1
    v_lshl_add_u32 v11, v12, 5, v11
    v_and_b32 v12, 3, v0
    v_lshl_add_u32 v11, v12, 3, v11
    s_add_u32 s7, s7, 49152
    v_add_u32 v11, s7, v11
    v_lshlrev_b32 v12, 6, v1
    v_lshl_add_u32 v12, v2, 4, v12
    s_lshl_b32 s28, s3, 11
    s_add_u32 s28, s28, {QS}
    v_add_u32 v12, s28, v12
    s_lshl_b32 s6, s17, 10
    s_add_u32 s27, s27, s6
    s_lshl_b32 s7, s4, 13
    s_add_u32 s6, s6, s7
    s_sub_u32 s6, s6, 16384
    v_lshlrev_b32 v4, 4, v0
    v_and_b32 v5, 48, v0
    v_xor_b32 v5, v4, v5
    v_add_u32 v4, s6, v4
    v_add_u32 v5, s6, v5''')
    k.sync([(0, 5, 4, 4)], 14, 's[56:57]'); k.stamp(4)
    for i in range(6): k(f's_add_u32 m0, s27, {4096*i}\ns_nop 0\nbuffer_load_dwordx4 v5, s[12:15], 0 offen sc1 lds\nv_add_u32 v5, 4096, v5')
    for i in range(6): k(f's_add_u32 m0, s27, {49152+4096*i}\ns_nop 0\nbuffer_load_dwordx4 v4, s[20:23], 0 offen sc1 lds\nv_add_u32 v4, 4096, v4')
    k('s_waitcnt vmcnt(6)\ns_barrier'); k.stamp(5)
    k(f'ds_read_b128 {vr(QF,4)}, v12\nds_read_b128 {vr(QF+4,4)}, v12 offset:32')
    def kread(b): k(f'ds_read_b128 {vr(KF+8*(b%4),4)}, v9 offset:{2048*b}\nds_read_b128 {vr(KF+8*(b%4)+4,4)}, v10 offset:{2048*b}')
    def vmax(b):
        s = S0+16*b
        if b == 0: k(f'v_max_f32 v13, v{s}, v{s+1}')
        for i in range(1 if b == 0 else 0, 8): k(f'v_max3_f32 v13, v{s+2*i}, v{s+2*i+1}, v13')
    for b in range(3): kread(b)
    for b in range(9):
        if b+3 < 9: kread(b+3)
        k(f's_waitcnt lgkmcnt({2*min(3, 8-b)})')
        for t in range(2): k(f'v_mfma_f32_32x32x16_bf16 {vr(S0+16*b,16)}, {vr(KF+8*(b%4)+4*t,4)}, {vr(QF+4*t,4)}, {vr(S0+16*b,16)}')
        if b == 2: k('s_nop 1')
        if b >= 2: vmax(b-2)
    k('s_waitcnt vmcnt(0)\ns_barrier')
    k.stamp(28); k('s_cmp_lt_u32 s3, 4\ns_cbranch_scc1 L_nst')
    for i in range(7): k(f's_add_u32 m0, s32, {WSG+4096*i}\ns_nop 0\nbuffer_load_dwordx4 v{WO[i]}, s[44:47], s33 offen lds')
    if 'T' in OPT.get('col', 'cfeQ'): k.prefetch(S_WO, 'col', 2*MB); k('v_mov_b32 v251, v250')
    k('L_nst:')
    for x in PF('T'): k.prefetch(*x, 8, 3)
    k.stamp(29)
    def vread(b):
        for t in range(2):
            for j in range(2): k(f'ds_read_b64_tr_b16 {vr(KF+8*(b%4)+4*t+2*j,2)}, v11 offset:{2048*b+1024*t+512*j}')
    vread(0); vread(1); k('s_nop 3'); vmax(7); vmax(8)
    k(f'''v_mov_b32 v14, v13
    s_mov_b32 s24, 0x3e8293ee
    s_mov_b32 s25, s24
    v_permlane32_swap_b32 v14, v13
    v_max_f32 v13, v13, v14
    v_mul_f32_e64 v14, s24, -v13
    v_mov_b32 v15, v14''')
    for b in range(9):
        s = S0+16*b
        if b+2 < 9: vread(b+2)
        for i in range(8): k(f'v_pk_fma_f32 {vr(s+2*i,2)}, {vr(s+2*i,2)}, s[24:25], v[14:15]')
        for i in range(16): k(f'v_exp_f32 v{s+i}, v{s+i}')
        for i in range(8): k(f'v_cvt_pk_bf16_f32 v{s+i}, v{s+2*i}, v{s+2*i+1}')
        k(f's_waitcnt lgkmcnt({4*min(2, 8-b)})\ns_nop 0')
        for t in range(2):
            k(f'v_mfma_f32_32x32x16_bf16 {vr(OA,16)}, {vr(KF+8*(b%4)+4*t,4)}, {vr(s+4*t,4)}, {vr(OA,16)}')
            k(f'v_mfma_f32_32x32x16_bf16 {vr(LA,16)}, {vr(ON,4)}, {vr(s+4*t,4)}, {vr(LA,16)}')
    k(f'''v_lshrrev_b32 v4, 4, v1
    v_lshl_add_u32 v4, v4, 2, v2
    v_and_b32 v1, 15, v0
    v_lshl_add_u32 v4, v4, 4, v1
    v_lshlrev_b32 v4, 4, v4
    s_lshl_b32 s6, s4, 18
    s_lshl_b32 s7, s18, 13
    s_add_u32 s6, s6, s7
    s_lshl_b32 s7, s17, 11
    s_add_u32 s6, s6, s7
    v_lshrrev_b32 v2, 4, v0
    s_nop 7
    v_rcp_f32 v13, v{LA}
    s_nop 0''')
    for i in range(16): k(f'v_mul_f32 v{OA+i}, v{OA+i}, v13')
    for i in range(8): k(f'v_cvt_pk_bf16_f32 v{16+i}, v{OA+2*i}, v{OA+2*i+1}')
    k(f'''s_nop 1
    v_permlane32_swap_b32 v16, v18
    v_permlane32_swap_b32 v17, v19
    v_permlane32_swap_b32 v20, v22
    v_permlane32_swap_b32 v21, v23
    buffer_store_dwordx4 v[16:19], v4, s[40:43], s6 offen sc1
    buffer_store_dwordx4 v[20:23], v4, s[40:43], s6 offen offset:512 sc1''')
    k.stamp(6); k('s_waitcnt vmcnt(2)\ns_barrier'); k.arrive(1)

def repack(k):
    k.srd(8, S_WS, WP, 7*MB); k.srd(12, S_WS, CS2, 16*16*896)
    k(f'''v_lshrrev_b32 v5, 2, v1
    v_lshl_add_u32 v5, v2, 3, v5
    v_mul_u32_u24 v5, 448, v5
    v_and_b32 v6, 3, v0
    v_lshl_add_u32 v5, v6, 3, v5
    v_and_b32 v6, 1, v2
    v_xor_b32 v6, s3, v6
    v_lshl_add_u32 v5, v6, 5, v5
    v_add_u32 v5, {WSG}, v5''')
    for j in range(4):
        for kk in range(2):
            for h in range(2): k(f'ds_read_b64_tr_b16 {vr(128+8*j+4*kk+2*h,2)}, v5 offset:{(32*kk+4*h)*448+128*j}')
    k(f'''s_lshl_b32 s6, s5, 4
    s_add_u32 s6, s6, s4
    s_mul_i32 s6, s6, 28672
    s_lshl_b32 s7, s3, 10
    s_add_u32 s26, s6, s7
    s_lshl_b32 s7, s4, 4
    s_add_u32 s7, s7, s5
    s_mul_i32 s7, s7, 896
    s_lshl_b32 s27, s3, 6
    s_add_u32 s27, s7, s27
    v_lshlrev_b32 v176, 4, v0
    v_add_u32 v177, 14336, v176
    v_lshlrev_b32 v178, 2, v1
    s_waitcnt lgkmcnt(0)''')
    for j in range(4):
        for kk in range(2): k(f'v_mfma_f32_16x16x32_bf16 {vr(160+4*j,4)}, v[248:251], {vr(128+8*j+4*kk,4)}, {vr(160+4*j,4) if kk else 0}')
    k = K('tmp', 0, 0, 0, 0); k('s_nop 4')
    k.spin(*((12, 1) if OPT.get('rp', 'cnt') == 'go' else (8, 9)), 179)
    for j in range(4):
        if j == 3: k('s_cmp_ge_u32 s3, 2\ns_cbranch_scc1 L_rp')
        k(f'''buffer_store_dwordx4 {vr(128+8*j,4)}, v176, s[8:11], s26 offen sc1
        buffer_store_dwordx4 {vr(132+8*j,4)}, v177, s[8:11], s26 offen sc1
        s_add_u32 s26, s26, 4096
        s_mov_b64 exec, 0xffff
        buffer_store_dword v{160+4*j}, v178, s[12:15], s27 offen offset:{256*j} sc1
        s_mov_b64 exec, -1''')
    k('L_rp:')
    return '\n'.join(k.L)

def res_compute(g, st, res_ptr, res_off, out_ptr, out_off, stats):
    k = g.k; R = g.FREE; sc = ' sc1' if stats else ''
    k.srd(16, res_ptr, res_off, 4*MB); k.srd(40, out_ptr, out_off, 4*MB); k.srd(44, S_WS, ST, 32768)
    g.pg16(13)
    k(f'''v_lshl_add_u32 v13, v1, 11, v13
    v_add_u32 v14, 32768, v13
    s_lshl_b32 s38, s4, 18
    s_lshl_b32 s6, s3, 16
    s_add_u32 s38, s38, s6
    s_lshl_b32 s6, s5, 7
    s_add_u32 s38, s38, s6
    s_lshl_b32 s50, s4, 18
    s_lshl_b32 s6, s5, 14
    s_add_u32 s50, s50, s6
    s_lshl_b32 s6, s3, 11
    s_add_u32 s50, s50, s6
    s_add_u32 s51, s50, 8192''')
    g.pkaddr(15)
    rm = lambda mt, p, sr: f'v{13+mt}, s[{sr}:{sr+3}], s38 offen offset:{64*p}'
    pk = lambda mt, p, sr: f'v15, s[{sr}:{sr+3}], s{50+p} offen offset:{1024*mt} sc1'
    ld, so = (rm, pk) if stats else (pk, rm)
    for mt in range(2):
        for p in range(2): k(f'buffer_load_dwordx4 {vr(R+8*mt+4*p,4)}, {ld(mt, p, 16)}')
    g.csetup()
    if stats: k(stats)
    g.mainloop(st, extra=[f's_cmp_lg_u32 s36, {g.nk-7}\ns_cbranch_scc1 L_nc\ns_waitcnt vmcnt(0)\nL_nc:'] if stats else [])
    if not stats and OPT.get('fl', 1): k('v_lshrrev_b32 v4, 3, v1\nv_mul_u32_u24 v4, 16320, v4\nv_sub_u32 v13, v13, v4\nv_sub_u32 v14, v14, v4\ns_add_u32 s39, s38, 16384')
    k('s_waitcnt vmcnt(0)')
    T = g.FX
    for mt in range(2):
        for p in range(2):
            r = R+8*mt+4*p; c = g.acc(mt, 2*p); d = g.FY + 8*mt + 4*p
            k(f'v_permlane16_swap_b32 v{r}, v{r+2}\nv_permlane16_swap_b32 v{r+1}, v{r+3}')
            unpack(k, r, 4, T)
            for i in range(4): k(f'v_pk_add_f32 {vr(c+2*i,2)}, {vr(c+2*i,2)}, {vr(T+2*i,2)}')
            g.pack_pair(c, c+4, d)
            if stats or not OPT.get('fl', 1): k(f'buffer_store_dwordx4 {vr(d,4)}, {so(mt, p, 40)}' + ('' if stats else ' nt'))
        if not stats and OPT.get('fl', 1):
            for i in range(4): k(f'v_mov_b32 v{T+i}, v{d-4+i}')
            for i in range(4): k(f'v_mov_b32_dpp v{d-4+i}, v{d+i} row_ror:8 row_mask:0xf bank_mask:0xc')
            for i in range(4): k(f'v_mov_b32_dpp v{d+i}, v{T+i} row_ror:8 row_mask:0xf bank_mask:0x3')
            k(f'buffer_store_dwordx4 {vr(d-4,4)}, v{13+mt}, s[40:43], s38 offen nt\nbuffer_store_dwordx4 {vr(d,4)}, v{13+mt}, s[40:43], s39 offen nt')
    if not stats: return
    for mt in range(2):
        unpack(k, g.FY + 8*mt, 8, T)
        k(f'v_pk_mul_f32 {vr(T+16,2)}, {vr(T,2)}, {vr(T,2)}')
        for i in range(1, 8): k(f'v_pk_fma_f32 {vr(T+16,2)}, {vr(T+2*i,2)}, {vr(T+2*i,2)}, {vr(T+16,2)}\nv_pk_add_f32 {vr(T,2)}, {vr(T,2)}, {vr(T+2*i,2)}')
        k(f'v_add_f32 v{4+mt}, v{T}, v{T+1}\nv_add_f32 v{6+mt}, v{T+16}, v{T+17}')
    k(f'''v_lshrrev_b32 v8, 5, v0
    v_lshl_add_u32 v8, v8, 4, v1
    v_permlane32_swap_b32 v4, v5
    v_permlane32_swap_b32 v6, v7
    v_add_f32 v4, v4, v5
    v_add_f32 v6, v6, v7
    v_and_b32 v9, 1, v2
    v_lshlrev_b32 v9, 2, v9
    v_permlane16_swap_b32 v4, v6
    v_lshl_add_u32 v8, v8, 3, v9
    v_add_f32 v4, v4, v6
    s_lshl_b32 s6, s4, 10
    s_lshl_b32 s7, s3, 8
    s_add_u32 s6, s6, s7
    buffer_atomic_add_f32 v4, v8, s[44:47], s6 offen''')
    k.stamp(27); k.arrive(2)

def win_compute(g, wc):
    k = g.k; nz = 4 - wc; Z = list(range(nz)); Y = list(range(nz, 7))
    g.mainloop(10, Z, 'ab'[wc])
    F = g.FX; R4 = F; N4 = F+16; CT = F+32; T = F+40; PQ = F+44; RR = F+76; CC = F+84
    k(f'''s_lshl_b32 s6, s30, 8
    s_add_u32 s6, s6, {TB}
    v_lshl_add_u32 v4, v2, 4, s6
    v_lshl_add_u32 v14, v1, 2, s6
    s_mov_b32 s6, {TB+1024+448*wc}
    v_lshl_add_u32 v5, v1, 2, s6
    v_lshl_add_u32 v15, v2, 4, s6
    v_mov_b32 v10, 0xc0135761
    v_mov_b32 v11, v10''')
    def rd_rn(o):
        for mt in range(4): k(f'ds_read_b128 {vr(R4+4*mt,4)}, v4 offset:{64*mt}\nds_read_b128 {vr(N4+4*mt,4)}, v4 offset:{o+64*mt}')
    rd_rn(512)
    for nt in Z: k(f'ds_read_b32 v{CT+2*nt}, v5 offset:{64*nt}')
    k('s_waitcnt lgkmcnt(0)')
    for mt in range(4): k(f'ds_read_b32 v{RR+2*mt}, v14 offset:{64*mt}\nds_read_b32 v{RR+2*mt+1}, v14 offset:{512+64*mt}')
    for nt in Y: k(f'ds_read_b128 {vr(CC+4*(nt-nz),4)}, v15 offset:{64*nt}')
    for mt in range(4):
        P, Q = PQ + 8*mt, PQ + 8*mt + 4
        for nt in Z:
            c = g.acc(mt, nt)
            for i in (0, 2): k(f'v_pk_mul_f32 {vr(c+i,2)}, {vr(c+i,2)}, {vr(R4+4*mt+i,2)}')
            for i in (0, 2): k(f'v_pk_fma_f32 {vr(c+i,2)}, {vr(N4+4*mt+i,2)}, {vr(CT+2*nt,2)}, {vr(c+i,2)} op_sel_hi:[1,0,1]')
            gelu4(k, c, T)
            for i in (0, 2):
                if nt == 0: k(f'v_mov_b32 v{P+i}, v{c+i}\nv_mov_b32 v{P+i+1}, v{c+i+1}\nv_pk_mul_f32 {vr(Q+i,2)}, {vr(c+i,2)}, {vr(c+i,2)}')
                else: k(f'v_pk_add_f32 {vr(P+i,2)}, {vr(P+i,2)}, {vr(c+i,2)}\nv_pk_fma_f32 {vr(Q+i,2)}, {vr(c+i,2)}, {vr(c+i,2)}, {vr(Q+i,2)}')
    k(f'''v_bfe_u32 v6, v0, 3, 1
    v_lshlrev_b32 v6, 2, v6
    v_add_u32 v6, v6, v2
    v_lshlrev_b32 v6, 1, v6
    v_bfe_u32 v7, v0, 2, 1
    v_add_u32 v6, v6, v7
    v_lshlrev_b32 v6, 2, v6
    v_and_b32 v7, 3, v0
    v_add_lshl_u32 v6, v6, v7, 2
    s_mov_b32 s56, 0xaaaaaaaa
    s_mov_b32 s57, s56
    s_mov_b32 s58, 0xcccccccc
    s_mov_b32 s59, s58
    s_lshl_b32 s38, s4, 10
    s_lshl_b32 s7, s30, 9
    s_add_u32 s38, s38, s7
    s_add_u32 s38, s38, 16384''')
    dpp = lambda d, a, m, bm: k(f'v_add_f32_dpp v{d}, v{a}, v{a} {m} row_mask:0xf bank_mask:{bm}')
    for i in range(2):
        a, b = PQ + 16*i, PQ + 16*i + 8
        for j in range(8): dpp(a+j, a+j, 'row_ror:8', '0x3')
        for j in range(8): dpp(a+j, b+j, 'row_ror:8', '0xc')
        four = [a, a+1, a+4, a+5]
        for j in four: dpp(j, j, 'row_shl:4', '0x5')
        for j in four: dpp(j, j+2, 'row_shr:4', '0xa')
        for j in four: dpp(j, j, 'quad_perm:[2,3,0,1]', '0xf')
        for j in four: dpp(j, j, 'quad_perm:[1,0,3,2]', '0xf')
        k(f'''v_cndmask_b32 v{a}, v{a}, v{a+4}, s[56:57]
        v_cndmask_b32 v{a+1}, v{a+1}, v{a+5}, s[56:57]
        v_cndmask_b32 v{a}, v{a}, v{a+1}, s[58:59]
        buffer_atomic_add_f32 v{a}, v6, s[44:47], s38 offen offset:{256*i}''')
    k(f's_mul_i32 s6, s30, {4*3584}\ns_add_u32 s6, s6, {ZS}\nv_lshl_add_u32 v14, v0, 3, s6\ns_waitcnt lgkmcnt(0)')
    def z1(mt):
        r = vr(RR+2*mt, 2)
        for nt in Y:
            c = g.acc(mt, nt)
            for i in (0, 2): k(f'v_pk_mul_f32 {vr(c+i,2)}, {vr(c+i,2)}, {r} op_sel_hi:[1,0]')
            for i in (0, 2): k(f'v_pk_fma_f32 {vr(c+i,2)}, {vr(CC+4*(nt-nz)+i,2)}, {r}, {vr(c+i,2)} op_sel:[0,1,0]')
            gelu4(k, c, T)
            k(f'v_cvt_pk_bf16_f32 v{c}, v{c}, v{c+1}\nv_cvt_pk_bf16_f32 v{c+1}, v{c+2}, v{c+3}')
            k(f'ds_write_b64 v14, {vr(c,2)} offset:{(mt*7 + nt - nz + 3*wc)*512}')
    k.stamp(13); za = OPT.get('za', 0)
    for i in range(3):
        if i == za: k.arrive(3)
        z1(i)
    k.spin(28, 1, 6); k.stamp(14)
    k(f'''v_lshlrev_b32 v7, 3, v0
    buffer_load_dwordx2 v[8:9], v7, s[44:47], s38 offen sc1
    s_lshl_b32 s7, s3, 9
    s_add_u32 s7, s7, {TB+2048}
    v_lshl_add_u32 v6, v0, 2, s7
    v_lshl_add_u32 v4, v2, 4, s7''')
    g.pkaddr(12)
    k(f'''    s_lshl_b32 s39, s5, 6
    s_lshl_b32 s7, s4, 2
    s_add_u32 s39, s39, s7
    s_lshl_b32 s7, s30, 1
    s_add_u32 s39, s39, s7
    s_mul_i32 s39, s39, 7168
    s_add_u32 s39, s39, {4096*wc}''')
    z1(3)
    k('s_waitcnt vmcnt(0)'); rstats(k, 8, 9, '0x3a124925')
    k('ds_write_b32 v6, v8\nds_write_b32 v6, v9 offset:256\ns_waitcnt lgkmcnt(0)')
    rd_rn(256); k('s_waitcnt lgkmcnt(0)')
    n = 0
    for i in range(2):
        for nt in Z:
            for mt in (2*i, 2*i+1):
                c = g.acc(mt, nt)
                for j in (0, 2): k(f'v_pk_fma_f32 {vr(c+j,2)}, {vr(c+j,2)}, {vr(R4+4*mt+j,2)}, {vr(N4+4*mt+j,2)}')
            d = PQ + 4*n; n += 1
            g.pack_pair(g.acc(2*i, nt), g.acc(2*i+1, nt), d)
            k(f'buffer_store_dwordx4 {vr(d,4)}, v12, s[16:19], s39 offen offset:{nt*1024} sc1')
        k('s_add_u32 s39, s39, 7168')
    k.stamp(15); k.arrive(4)

def win_pre(k):
    def pre(ph):
        if ph == 0:
            k.srd(44, S_WS, ST, 32768); k.srd(40, S_WS, CS2, 16*16*896)
            k(f'''s_lshl_b32 s6, s29, 6
            v_add_u32 v24, s6, v0
            v_and_b32 v25, 127, v24
            v_lshlrev_b32 v23, 3, v25
            s_lshl_b32 s6, s4, 10
            buffer_load_dwordx2 v[26:27], v23, s[44:47], s6 offen sc1
            v_min_u32 v22, 223, v24
            v_lshlrev_b32 v22, 2, v22
            s_mul_i32 s6, s5, 896''')
            for i in range(16): k(f'buffer_load_dword v{28+i}, v22, s[40:43], s6 offen sc1\ns_add_u32 s6, s6, 14336')
        else:
            rstats(k, 26, 27, '0x3a800000')
            for i in range(1, 16): k(f'v_add_f32 v28, v28, v{28+i}')
            k(f'''s_mov_b32 s6, {TB}
            v_lshl_add_u32 v25, v25, 2, s6
            v_lshl_add_u32 v24, v24, 2, s6
            ds_write_b32 v25, v26
            ds_write_b32 v25, v27 offset:512
            ds_write_b32 v24, v28 offset:1024
            s_waitcnt lgkmcnt(0)''')
    return pre

def sp_compute(g):
    k = g.k; ZR = g.FREE; BB = ZR + 28
    k.srd(40, S_WS, U_, 2048*3584); k.srd(44, S_BSP, 0, 4096)
    k(f's_lshl_b32 s38, s4, 3\ns_lshl_b32 s7, s3, 1\ns_add_u32 s38, s38, s7\ns_lshl_b32 s7, s38, 5\nv_lshlrev_b32 v15, 1, v1')
    for mt in range(2): k(f'buffer_load_ushort v{BB+2*mt}, v15, s[44:47], s7 offen offset:{32*mt}')
    g.csetup(); g.mainloop(16)
    k(f's_mul_i32 s6, s3, 7168\ns_add_u32 s6, s6, {ZS}\nv_lshl_add_u32 v6, v0, 3, s6')
    for i in range(14): k(f'ds_read_b64 {vr(ZR+2*i,2)}, v6 offset:{512*i}')
    g.pkaddr(4)
    k(f'''v_and_b32 v5, 1, v2
    v_lshrrev_b32 v3, 1, v2
    v_lshl_add_u32 v5, v5, 2, v3
    v_lshl_add_u32 v5, v5, 4, v1
    v_lshlrev_b32 v5, 4, v5
    s_mul_i32 s6, s4, {128*3584}
    s_lshr_b32 s7, s5, 1
    s_mul_i32 s7, s7, {7*8192}
    s_add_u32 s6, s6, s7
    s_lshl_b32 s7, s3, 11
    s_add_u32 s6, s6, s7
    s_waitcnt vmcnt(0) lgkmcnt(0)
    v_lshlrev_b32 v{BB}, 16, v{BB}
    v_lshlrev_b32 v{BB+2}, 16, v{BB+2}
    s_bitcmp1_b32 s5, 0
    s_cbranch_scc1 {g.lab('odd')}''')
    T = g.FX
    def prep(mt, nt):
        c = g.acc(mt, nt)
        unpack(k, ZR+14*mt+2*nt, 2, T)
        for i in (0, 2): k(f'v_pk_add_f32 {vr(c+i,2)}, {vr(c+i,2)}, {vr(BB+2*mt,2)} op_sel_hi:[1,0]')
        for i in (0, 2): k(f'v_pk_mul_f32 {vr(c+i,2)}, {vr(c+i,2)}, {vr(T+i,2)}')
        return c
    for odd in range(2):
        d = T + 4
        for i in range(3):
            k(f's_add_u32 s7, s6, {(4*odd+i)*8192}')
            for mt in range(2):
                g.pack_pair(prep(mt, 2*i+odd), prep(mt, 2*i+odd+1), d)
                k(f'buffer_store_dwordx4 {vr(d,4)}, v4, s[40:43], s7 offen offset:{1024*mt} sc1'); d += 4
        g.pack_pair(prep(0, 6-6*odd), prep(1, 6-6*odd), d)
        k(f's_add_u32 s7, s6, {3*8192}\nbuffer_store_dwordx4 {vr(d,4)}, v5, s[40:43], s7 offen offset:{512*odd} sc1')
        k(f's_branch {g.lab("ex")}\n{g.lab("odd")}:' if odd == 0 else f'{g.lab("ex")}:')
    k.stamp(26); k.arrive(5)

def k_mega():
    k = K('sequential_preLN__sliding_block__mixer_gmlp__prompt', 256, 512, 163840, 256); o = OPT
    Q = Gemm(k, 'q', 192, 1024, 2048, 6144, 2, 2, o.get('qNS', 4), 'tr', 128, ((0, 0), (4, 1984), (8, 3968), (12, -128), (16, 1856), (20, 3840)))
    C = Gemm(k, 'c', 64, 1024, 2048, 2048, 4, 1, 6, 'tr', afrag=True)
    D = Gemm(k, 'd', 224, 1024, 2048, 0, 2, 2, 3, 'frag', afrag=True)
    DT = Gemm(k, 'dt', 224, 1024, 2048, 7168, 2, 2, 3, 'tr', 224, ((0, 3584), (8, -128), (14, 3488), (20, -224)), True)
    E = Gemm(k, 'e', 112, 2048, 4096, 0, 4, 1, 4, 'frag')
    F = Gemm(k, 'f', 64, 1792, 3584, 2048, 4, 1, 6, 'tr', afrag=True)
    xr = o.get('xr', 4); lx = xr.bit_length()-1; nxc = 16//(32//xr); lc = nxc.bit_length()-1
    k(f'''s_cmp_ge_u32 s2, 256
    s_cbranch_scc1 {k.lab('end')}
    s_load_dwordx16 s[64:79], s[0:1], 0
    s_load_dwordx4 s[80:83], s[0:1], 64
    s_load_dwordx2 s[84:85], s[0:1], 80
    v_lshrrev_b32 v1, 6, v0
    v_and_b32 v0, 63, v0
    v_readfirstlane_b32 s3, v1
    s_and_b32 s6, s2, 7
    s_lshr_b32 s7, s2, 3
    s_lshr_b32 s4, s6, {lc}
    s_lshl_b32 s4, s4, {lx}
    s_and_b32 s28, s7, {xr-1}
    s_add_u32 s4, s4, s28
    s_and_b32 s5, s6, {nxc-1}
    s_mul_i32 s5, s5, {32//xr}
    s_lshr_b32 s28, s7, {lx}
    s_add_u32 s5, s5, s28
    s_xor_b32 s5, s5, {o.get('x5', 0)}
    v_and_b32 v1, 15, v0
    v_lshrrev_b32 v2, 4, v0
    s_mov_b32 s37, 1000000
    v_mov_b32 v254, {SY}
    s_sub_u32 s29, s3, 4
    s_waitcnt lgkmcnt(0)''')
    k.srd(60, S_WS, FL, 65536)
    k(f's_cmp_lt_u32 s3, 4\ns_cbranch_scc1 {k.lab("cq")}')
    k.stamp(0)
    def qtail():
        lb = k.uid('dbg')
        k.srd(44, S_WS, LS, 16384); k.srd(40, S_WS, CS, 16*16*768)
        k(f'''s_lshl_b32 s7, s4, 7
        s_add_u32 s7, s7, s5
        s_lshl_b32 s7, s7, 2
        s_add_u32 s7, s7, {7*8192}
        {lb}:
        buffer_load_dword v16, off, s[60:63], s7 sc1
        s_sub_u32 s37, s37, 1
        s_cselect_b32 s37, 0, s37
        s_cbranch_scc1 {lb}x
        s_waitcnt vmcnt(0)
        v_readfirstlane_b32 s6, v16
        s_cmp_lg_u32 s6, 1
        s_cbranch_scc1 {lb}
        {lb}x:
        s_lshl_b32 s6, s29, 6
        v_add_u32 v24, s6, v0
        v_and_b32 v25, 127, v24
        v_lshlrev_b32 v23, 3, v25
        s_lshl_b32 s6, s4, 10
        buffer_load_dwordx2 v[26:27], v23, s[44:47], s6 offen sc1
        v_min_u32 v22, 191, v24
        v_lshlrev_b32 v22, 2, v22
        s_mul_i32 s6, s5, 768''')
        for i in range(16): k(f'buffer_load_dword v{28+i}, v22, s[40:43], s6 offen sc1\ns_add_u32 s6, s6, {16*768}')
        return 17
    Q.loader(S_X, 0, S_WQKV, 0, 1024*6144, tail=qtail, pf=((S_WO, 0, 2*MB),))
    k('v_lshl_add_u32 v3, v1, 2, v254\nv_mov_b32 v4, 0\nds_write_b32 v3, v4\ns_waitcnt vmcnt(1)')
    for i in range(1, 16): k(f'v_add_f32 v28, v28, v{28+i}')
    k(f'''s_mov_b32 s6, {TB}
    v_lshl_add_u32 v25, v25, 2, s6
    v_lshl_add_u32 v24, v24, 2, s6
    ds_write_b32 v25, v26
    ds_write_b32 v25, v27 offset:512
    ds_write_b32 v24, v28 offset:1024
    s_mul_i32 s33, s4, {64*7168}
    s_lshl_b32 s32, s29, 10
    s_lshl_b32 s6, s2, 2
    s_add_u32 s6, s6, s29
    s_lshl_b32 s6, s6, 11
    v_lshlrev_b32 v4, 5, v0
    s_waitcnt lgkmcnt(0)
    s_barrier''')
    DT.woffs(WO); k(f's_mul_i32 s6, s5, 224'); k.srd(44, S_WIN, 0, 1024*7168, 6); k('s_sub_u32 s46, s46, s6')
    k(f's_branch {k.lab("attn")}\n{k.lab("cq")}:')
    k.stamp(0)
    F0 = Q.FX; W0, X0, A8 = 192, 224, 240
    Q.csetup()
    k.srd(8, S_WQKV, 0, 1024*6144); k.srd(12, S_WS, CS, 16*16*768); k.srd(20, S_X, 0, 4*MB); k.srd(24, S_WS, ST, 114688)
    k(f'''s_lshl_b32 s28, s4, 4
    s_add_u32 s28, s28, s5
    s_lshl_b32 s6, s28, 2
    s_add_u32 s41, s6, s3
    s_lshl_b32 s6, s41, 12
    v_lshlrev_b32 v10, 4, v0''')
    for i in range(4): k(f'buffer_load_dwordx4 {vr(X0+4*i,4)}, v10, s[20:23], s6 offen offset:{1024*i}')
    k(f'''s_lshl_b32 s41, s41, 4
    s_add_u32 s41, s41, {LS-ST}
    s_mul_i32 s40, s28, 768
    s_lshl_b32 s7, s3, 8
    s_add_u32 s40, s40, s7
    s_cmp_eq_u32 s3, 3
    s_cbranch_scc1 L_xs
    v_lshrrev_b32 v10, 3, v0
    v_and_b32 v11, 7, v0
    v_lshlrev_b32 v11, 4, v11
    s_mov_b32 s6, 6144
    v_mad_u32_u24 v10, v10, s6, v11
    s_mul_i32 s6, s4, {64*6144}
    s_lshl_b32 s7, s3, 11
    s_add_u32 s6, s6, s7
    s_lshl_b32 s7, s5, 7
    s_add_u32 s6, s6, s7''')
    for i in range(8): k(f'buffer_load_dwordx4 {vr(W0+4*i,4)}, v10, s[8:11], s6 offen\ns_add_u32 s6, s6, {8*6144}')
    k(f'''s_branch L_qm
    L_xs:
    s_lshl_b32 s28, s28, 6
    v_lshlrev_b32 v10, 14, v2
    v_lshl_add_u32 v10, v1, 2, v10
    v_lshlrev_b32 v11, 13, v0
    s_lshl_b32 s6, s4, 9
    s_lshl_b32 s7, s5, 2
    s_add_u32 s6, s6, s7
    s_mov_b32 exec_hi, 0
    buffer_store_dword v16, v10, s[24:27], s28 offen sc1
    s_mov_b64 exec, 0xff
    buffer_store_dword v16, v11, s[60:63], s6 offen sc1
    s_mov_b64 exec, -1
    L_qm:
    v_mov_b32 v15, 1
    s_cmp_eq_u32 s3, 0
    s_cselect_b32 s39, {Q.nk-o.get('pi', 0)-3}, -1''')
    p = K('tmp', 0, 0, 0, 0)
    nq = (p.prefetch(S_WQKV, 'col', 6*MB, wv=3) if 'Q' in o.get('col', 'cfeQ') else 0) + (p.prefetch(S_X, 'row', 4*MB, wv=3) if 'X' in o.get('col', 'cfeQ') else 0)
    p(f's_waitcnt vmcnt({nq})')
    if 'q' in o.get('col', 'cfeQ'): p.prefetch(S_WQKV, 'col', 6*MB, wv=3)
    p('s_mov_b32 s6, 0x3f803f80')
    for j in range(16):
        for q in range(2):
            a = A8 + 2*(j//8) + q; x = f'v{X0+j}'
            p(f'v_dot2_f32_bf16 v{a}, {x}, {x if q else "s6"}, {f"v{a}" if j % 8 else 0}')
    p('s_nop 2')
    def allsum(n, T, rors):
        for r in rors:
            for j in range(n): p(f'v_add_f32_dpp v{A8+j}, v{A8+j}, v{A8+j} row_ror:{r} row_mask:0xf bank_mask:0xf')
        for q in (16, 32):
            for j in range(n): p(f'v_mov_b32 v{T+j}, v{A8+j}')
            for j in range(n): p(f'v_permlane{q}_swap_b32 v{T+j}, v{A8+j}')
            for j in range(n): p(f'v_add_f32 v{A8+j}, v{A8+j}, v{T+j}')
    allsum(4, A8+4, (8, 4, 2, 1))
    rstats(p, A8, A8+1, '0x3a800000'); rstats(p, A8+2, A8+3, '0x3a800000')
    p(f's_mov_b64 exec, 1\nbuffer_store_dwordx4 {vr(A8,4)}, off, s[24:27], s41 sc1\ns_mov_b64 exec, -1\ns_cmp_eq_u32 s3, 3\ns_cbranch_scc1 L_np')
    for i in range(8):
        unpack(p, W0+4*i, 4, X0 if i else A8)
        if i:
            for j in range(4): p(f'v_pk_add_f32 {vr(A8+2*j,2)}, {vr(A8+2*j,2)}, {vr(X0+2*j,2)}')
    allsum(8, X0, (8,))
    p(f'''v_lshlrev_b32 v10, 5, v0
    s_mov_b64 exec, 0xff
    buffer_store_dwordx4 {vr(A8,4)}, v10, s[12:15], s40 offen sc1
    buffer_store_dwordx4 {vr(A8+4,4)}, v10, s[12:15], s40 offen offset:16 sc1
    s_mov_b64 exec, -1
    L_np:''')
    k.srd(52, 82, 0, 256); k.srd(16, S_WS, QKV, 12*MB); k.srd(44, S_WIN, 0, 64); k('s_mov_b32 s33, 0')
    k(f'v_lshlrev_b32 v13, 9, v2\nv_lshl_add_u32 v13, v1, 2, v13\nv_mov_b32 v14, 1\ns_sub_u32 s38, s39, 2\ns_mov_b32 s50, {7*8192}\ns_mov_b32 s51, {7*8192+4096}')
    k('\n'.join(p.L))
    Q.mainloop(1, extra=[f's_cmp_lg_u32 s36, {Q.nk-o.get("pi", 0)-2}\ns_cbranch_scc1 L_nw\ns_waitcnt vmcnt(0)\nL_nw:',
        's_cmp_lg_u32 s36, s39\ns_cbranch_scc1 L_na\ns_mov_b64 exec, 1\nbuffer_atomic_add v15, off, s[52:55], 0 sc0\ns_mov_b64 exec, -1\nL_na:',
        's_cmp_lg_u32 s36, s38\ns_cbranch_scc1 L_nb\ns_waitcnt vmcnt(0)\nv_readfirstlane_b32 s6, v15\ns_and_b32 s6, s6, 255\ns_cmp_lg_u32 s6, 255\ns_cbranch_scc1 L_nb\n'
        + ''.join(f'buffer_store_dword v14, v13, s[60:63], s{50+i//2} offen offset:{2048*(i%2)} sc1\n' for i in range(4)) + 'L_nb:'])
    RR, CC = F0+48, F0+56
    k(f'''s_barrier
    s_lshl_b32 s6, s30, 8
    s_add_u32 s6, s6, {TB}
    v_lshl_add_u32 v6, v1, 2, s6
    s_lshl_b32 s6, s31, 7
    s_add_u32 s6, s6, {TB+1024}
    v_lshl_add_u32 v7, v2, 4, s6''')
    for mt in range(4): k(f'ds_read_b32 v{RR+2*mt}, v6 offset:{64*mt}\nds_read_b32 v{RR+2*mt+1}, v6 offset:{512+64*mt}')
    for nt in range(6): k(f'ds_read_b128 {vr(CC+4*nt,4)}, v7 offset:{256*(nt//2)+64*(nt%2)}')
    k.stamp(23); Q.pg16(4)
    k(f'''v_lshl_add_u32 v4, v1, 6, v4
    s_lshl_b32 s6, s5, 1
    s_add_u32 s6, s6, s31
    s_lshl_b32 s6, s6, 17
    s_lshl_b32 s7, s4, 13
    s_add_u32 s6, s6, s7
    s_lshl_b32 s7, s30, 12
    s_add_u32 s6, s6, s7
    s_lshl_b32 s28, s31, 13
    s_add_u32 s7, s7, s28
    s_add_u32 s7, s7, {QS}
    v_add_u32 v5, s7, v4
    s_waitcnt lgkmcnt(0)''')
    n = 0
    for p in (1, 2, 0):
        k(f's_add_u32 s6, s6, {32*131072}')
        for mt in range(4):
            d = Q.FX + 4*n; n += 1; c = Q.acc(mt, 2*p); r = vr(RR+2*mt, 2)
            for i in range(0, 8, 2): k(f'v_pk_mul_f32 {vr(c+i,2)}, {vr(c+i,2)}, {r} op_sel_hi:[1,0]')
            for i in range(0, 8, 2): k(f'v_pk_fma_f32 {vr(c+i,2)}, {vr(CC+8*p+i,2)}, {r}, {vr(c+i,2)} op_sel:[0,1,0]')
            Q.pack_pair(Q.acc(mt, 2*p), Q.acc(mt, 2*p+1), d)
            k(f'buffer_store_dwordx4 {vr(d,4)}, v4, s[16:19], s6 offen offset:{mt*1024} sc1' if p else f'ds_write_b128 v5, {vr(d,4)} offset:{mt*1024}')
    k.stamp(24); k.arrive(0); k.stamp(25)
    k(f'{k.lab("attn")}:')
    attn(k)
    k(f's_cmp_lt_u32 s3, 4\ns_cbranch_scc1 {k.lab("cc")}')
    C.loader(S_WS, O_, S_WO, 0, 2*MB, lambda f: k.sync([(1, 4, 5, 8)], 16, mid=f), st=7, lpf=PF('c'), pf=PF('C'), pub=(6, 5, 4))
    D.loader(S_WS, H_, S_WS, WP, 0, lambda f: k.sync([(2, 4, 5, 4)], 16, mid=f), pre=win_pre(k), st=10, lpf=PF('d'), pf=[(S_WSP, (4096, 4, 128*4096, 32*4096, 128, 3), 8*MB)][:'D' in o.get('own', 'DE')] + PF('D'), dep0=lambda: k.sync([(6, 5, 4, 0)], 16))
    E.loader(S_WSP, 0, S_WS, Z2, 0, lambda f: k.sync([(3, 4, 5, 4), (4, 5, 4, 4)], 16, mid=f), depA=False, st=16, lpf=PF('e'), pf=[(S_WOUT, (2048, 5, 128, 32*2048, 128*2048, 3), 1792*2048)][:'E' in o.get('own', 'DE')] + [(S_WOUT, 'col', 1792*2048)][:'E' in o.get('col', 'cfeQ')] + PF('E'))
    F.loader(S_WS, U_, S_WOUT, 0, 1792*2048, lambda f: k.sync([(5, 4, 5, 4)], 16, mid=f), st=19)
    k.stamp_out(); k(f's_endpgm\n{k.lab("cc")}:')
    res_compute(C, 7, S_X, 0, S_WS, H_, repack(k))
    k.srd(16, S_WS, Z2, 8*MB)
    D.csetup()
    k(f's_mov_b32 s48, 0xbdd2d3e8\ns_mov_b32 s49, s48\ns_cmp_eq_u32 s31, 1\ns_cbranch_scc1 {k.lab("d1")}')
    win_compute(D, 0); k(f's_branch {k.lab("ce")}\n{k.lab("d1")}:'); win_compute(D, 1)
    k(f'{k.lab("ce")}:')
    sp_compute(E)
    res_compute(F, 19, S_WS, H_, S_OUT, 0, False)
    if o.get('ts'): k('s_waitcnt vmcnt(0)'); k.stamp(22)
    k.stamp_out(); k(f'{k.lab("end")}:\ns_endpgm')
    return k
```
